```python
import torch

def _softmax(x, axis=-1):
    return torch.softmax(x, dim=axis)
def _gelu(x):
    return torch.nn.functional.gelu(x, approximate="tanh")
def _silu(x):
    return torch.nn.functional.silu(x)
def _sigmoid(x):
    return torch.sigmoid(x)
def _layernorm(x, axis=-1, eps=1e-5):
    m = x.mean(dim=axis, keepdim=True)
    v = x.var(dim=axis, keepdim=True, unbiased=False)
    return (x - m) / torch.sqrt(v + eps)
def _scatter_add(tgt, idx, src, axis=0):
    return tgt.clone().index_add_(axis, idx, src)
def _segment_sum(src, seg, n):
    out = torch.zeros((n,) + src.shape[1:], dtype=src.dtype)
    return out.index_add_(0, seg, src)
def _pad(x, pw):
    flat = tuple(v for pair in reversed(pw) for v in pair)
    return torch.nn.functional.pad(x, flat)

kernel_name = 'parallel_sum__sliding_local_dilated__glu_gated_swiglu__prompt'

def setup_inputs():

    _w = (lambda a: (lambda t: t.to(torch.bfloat16) if t.is_floating_point() else t)(torch.as_tensor(a)))
    def _A_setup():
        B, S, D = 1, 2048, 576
        return {
            "x": _w((lambda *s: torch.randn(*s, dtype=torch.bfloat16) * 0.05)(B, S, D)),
            "wqkv": _w((lambda *s: torch.randn(*s, dtype=torch.bfloat16) * 0.05)(D, 3 * D)),
            "wo": _w((lambda *s: torch.randn(*s, dtype=torch.bfloat16) * 0.05)(D, D)),
        }
    _A_in = _A_setup()

    def _B_setup():
        B, S, D, F = 1, 2048, 576, 4608
        return {
            "x": _w((lambda *s: torch.randn(*s, dtype=torch.bfloat16) * 0.05)(B, S, D)),
            "w1": _w((lambda *s: torch.randn(*s, dtype=torch.bfloat16) * 0.8)(D, F) * (2.0 / D) ** 0.5),
            "w3": _w((lambda *s: torch.randn(*s, dtype=torch.bfloat16) * 0.8)(D, F) * (2.0 / D) ** 0.5),
            "w2": _w((lambda *s: torch.randn(*s, dtype=torch.bfloat16) * 0.8)(F, D) * (2.0 / F) ** 0.5),
        }
    _B_in = _B_setup()

    return {
        "A_x": _A_in["x"],
        "A_wqkv": _A_in["wqkv"],
        "A_wo": _A_in["wo"],
        "B_x": _B_in["x"],
        "B_w1": _B_in["w1"],
        "B_w3": _B_in["w3"],
        "B_w2": _B_in["w2"],
    }

def reference(A_x, A_wqkv, A_wo, B_x, B_w1, B_w3, B_w2):
    def _A_ref(x, wqkv, wo):
        B, S, D = x.shape
        H = 32; Dh = D // H
        W, dil = 8, 2
        qkv = (lambda x, *d: x.permute(*d))((x @ wqkv).reshape(B, S, 3, H, Dh), 2, 0, 3, 1, 4)
        q, k, v = qkv[0], qkv[1], qkv[2]
        scale = Dh ** -0.5
        pos = torch.arange(S)
        off = torch.arange(W) * dil
        idx = pos[:, None] - off[None, :]
        mask = idx >= 0
        idx_c = torch.where(mask, idx, 0).reshape(-1)
        kg = k[:, :, idx_c, :].reshape(B, H, S, W, Dh)
        vg = v[:, :, idx_c, :].reshape(B, H, S, W, Dh)
        logits = torch.einsum("bhsd,bhswd->bhsw", q, kg) * scale
        logits = torch.where(mask[None, None, :, :], logits, -1e9)
        attn = _softmax(logits, axis=-1)
        o = torch.einsum("bhsw,bhswd->bhsd", attn, vg)
        return (lambda x, *d: x.permute(*d))(o, 0, 2, 1, 3).reshape(B, S, D) @ wo

    def _B_ref(x, w1, w3, w2):
        gate = torch.einsum("bsd,df->bsf", x, w1)
        up = torch.einsum("bsd,df->bsf", x, w3)
        h = _silu(gate) * up
        out = torch.einsum("bsf,fd->bsd", h, w2)
        return out

    x = A_x
    xn = _layernorm(x, axis=-1)
    return x + _A_ref(xn, A_wqkv, A_wo) + _B_ref(xn, B_w1, B_w3, B_w2)
```

```python
class Asm:
    def __init__(self):
        self.lines = []
        self.vm = []
        self.lg = []
    def e(self, s):
        self.lines.append("    " + s)
    def c(self, s):
        self.lines.append("    ; " + s)
    def label(self, l):
        self.lines.append(l + ":")
    def raw(self, s):
        self.lines.append(s)
    def reset(self):
        self.vm = []; self.lg = []
    def vmem(self, s, tag=None):
        self.e(s); self.vm.append(tag)
        assert len(self.vm) <= 63, "vmcnt overflow"
    def lds(self, s, tag=None):
        self.e(s); self.lg.append(tag)
        assert len(self.lg) <= 15, "lgkmcnt overflow %d" % len(self.lg)
    def _n(self, q, tags):
        if not isinstance(tags, (list, set)): tags = [tags]
        idx = [i for i, t in enumerate(q) if t in tags]
        if not idx: return None
        return max(idx)
    def wait(self, vm=None, lg=None, vm_all=False, lg_all=False):
        parts = []
        if vm_all:
            if self.vm: parts.append("vmcnt(0)"); self.vm = []
        elif vm is not None:
            i = self._n(self.vm, vm)
            if i is not None:
                parts.append("vmcnt(%d)" % (len(self.vm) - 1 - i)); self.vm = self.vm[i+1:]
        if lg_all:
            if self.lg: parts.append("lgkmcnt(0)"); self.lg = []
        elif lg is not None:
            i = self._n(self.lg, lg)
            if i is not None:
                parts.append("lgkmcnt(%d)" % (len(self.lg) - 1 - i)); self.lg = self.lg[i+1:]
        if parts:
            self.e("s_waitcnt " + " ".join(parts))
            return True
        return False
    def text(self):
        return "\n".join(self.lines) + "\n"

def v(a, n=1):
    return "v%d" % a if n == 1 else "v[%d:%d]" % (a, a + n - 1)
def s(a, n=1):
    return "s%d" % a if n == 1 else "s[%d:%d]" % (a, a + n - 1)

def kernel_begin(A, name):
    A.raw(".text")
    A.raw(".globl %s" % name)
    A.raw(".p2align 8")
    A.raw(".type %s,@function" % name)
    A.label(name)
    A.reset()

def kernel_desc(name, nvgpr, nsgpr=102, accum=None):
    if accum is None: accum = (nvgpr + 3) // 4 * 4
    return """.section .rodata,"a"
.p2align 6
.amdhsa_kernel %s
  .amdhsa_next_free_vgpr %d
  .amdhsa_next_free_sgpr %d
  .amdhsa_accum_offset %d
  .amdhsa_group_segment_fixed_size 0
  .amdhsa_kernarg_size 80
  .amdhsa_user_sgpr_count 2
  .amdhsa_user_sgpr_kernarg_segment_ptr 1
  .amdhsa_system_sgpr_workgroup_id_x 1
.end_amdhsa_kernel
""" % (name, nvgpr, nsgpr, accum)

def srd(A, d, base, size):
    A.e("s_mov_b32 s%d, s%d" % (d, base))
    A.e("s_and_b32 s%d, s%d, 0xffff" % (d + 1, base + 1))
    if isinstance(size, int):
        A.e("s_mov_b32 s%d, 0x%x" % (d + 2, size))
    else:
        A.e("s_mov_b32 s%d, %s" % (d + 2, size))
    A.e("s_mov_b32 s%d, 0x00020000" % (d + 3))
```

```python
from asmlib import *
import gen as G

def gen_k2(A, opt):
    kernel_begin(A, "k2_gemm2_kernel")
    T = 240
    L = T + 1
    A.e("s_cmp_ge_u32 s2, 256")
    A.e("s_cbranch_scc1 K2_END")
    G.stamp_begin(A, opt)
    A.e("s_load_dwordx2 s[4:5], s[0:1], 48")
    A.e("s_load_dwordx2 s[8:9], s[0:1], 16")
    A.e("s_load_dwordx2 s[6:7], s[0:1], 72")
    A.e("v_lshrrev_b32 v%d, 6, v0" % T)
    A.e("v_and_b32 v%d, 63, v0" % L)
    A.e("v_readfirstlane_b32 s12, v%d" % T)
    A.e("s_and_b32 s13, s2, 7")
    A.e("s_lshr_b32 s14, s2, 3")
    VL16 = 238
    VW = 239
    A.e("v_lshlrev_b32 v%d, 4, v%d" % (VL16, L))
    A.e("v_lshrrev_b32 v%d, 3, v%d" % (T + 2, L))
    A.e("v_bfe_u32 v%d, v%d, 1, 2" % (T + 3, L))
    A.e("v_bfe_u32 v%d, v%d, 4, 1" % (T + 4, L))
    A.e("v_lshlrev_b32 v%d, 1, v%d" % (T + 4, T + 4))
    A.e("v_xor_b32 v%d, v%d, v%d" % (T + 3, T + 3, T + 4))
    A.e("v_mul_u32_u24 v%d, 1152, v%d" % (VW, T + 2))
    A.e("v_lshl_add_u32 v%d, v%d, 5, v%d" % (VW, T + 3, VW))
    A.e("v_and_b32 v%d, 1, v%d" % (T + 4, L))
    A.e("v_lshl_add_u32 v%d, v%d, 4, v%d" % (VW, T + 4, VW))
    VT0 = 236; VT1 = 237
    A.e("v_bfe_u32 v%d, v%d, 4, 1" % (T + 2, L))
    A.e("v_bfe_u32 v%d, v%d, 5, 1" % (T + 3, L))
    A.e("v_bfe_u32 v%d, v%d, 2, 2" % (T + 4, L))
    A.e("v_and_b32 v%d, 3, v%d" % (T + 5, L))
    A.e("v_lshlrev_b32 v%d, 3, v%d" % (T + 5, T + 5))
    A.e("v_lshl_add_u32 v%d, v%d, 7, v%d" % (T + 5, T + 4, T + 5))
    A.e("v_lshl_add_u32 v%d, v%d, 9, v%d" % (T + 5, T + 3, T + 5))
    A.e("v_bfe_u32 v%d, v%d, 3, 1" % (T + 6, L))
    A.e("v_lshl_or_b32 v%d, v%d, 1, v%d" % (T + 6, T + 6, T + 2))
    A.e("v_lshl_add_u32 v%d, v%d, 5, v%d" % (VT0, T + 6, T + 5))
    A.e("v_xor_b32 v%d, 64, v%d" % (VT1, VT0))
    A.e("s_waitcnt lgkmcnt(0)")
    srd(A, 16, 4, G.SZ_W)
    srd(A, 20, 8, G.SZ_WO)
    srd(A, 24, 6, G.WS_SIZE)
    A.e("s_cmp_ge_u32 s14, 24")
    A.e("s_cbranch_scc1 K2_ATT")
    A.e("s_and_b32 s15, s13, 3")
    A.e("s_lshr_b32 s32, s13, 2"); A.e("s_lshl_b32 s32, s32, 3"); A.e("s_and_b32 s33, s14, 7"); A.e("s_add_u32 s32, s32, s33")
    A.e("s_lshr_b32 s33, s14, 3")
    A.e("s_cmp_ge_u32 s12, 4")
    A.e("s_cbranch_scc1 K2_FLOAD")
    NST = 18
    SLOT = 40960
    ACC = 0
    FB = 96
    VAa = 140
    VBa = 143
    A.e("s_and_b32 s34, s12, 1"); A.e("s_lshr_b32 s35, s12, 1")
    A.e("s_cmp_eq_u32 s35, 0")
    A.e("s_cselect_b64 vcc, -1, 0")
    A.e("v_cndmask_b32 v%d, v%d, v%d, vcc" % (VAa, VT1, VT0))
    A.e("v_cndmask_b32 v%d, v%d, v%d, vcc" % (VAa + 1, VT0, VT1))
    A.e("v_mov_b32 v%d, v%d" % (VAa + 2, VAa))
    A.e("s_cselect_b32 s36, 0, 8192"); A.e("s_add_u32 s36, s36, 16384")
    A.e("v_add_u32 v%d, s36, v%d" % (VAa, VAa))
    A.e("s_cmp_eq_u32 s35, 0")
    A.e("s_cselect_b32 s36, 0, 16384"); A.e("s_add_u32 s36, s36, 16384")
    A.e("v_add_u32 v%d, s36, v%d" % (VAa + 1, VAa + 1))
    A.e("s_cmp_eq_u32 s35, 0")
    A.e("s_cselect_b32 s36, 0, 8192"); A.e("s_add_u32 s36, s36, %d" % (16384 + 8192))
    A.e("v_add_u32 v%d, s36, v%d" % (VAa + 2, VAa + 2))
    A.e("s_lshl_b32 s36, s34, 13")
    A.e("v_add_u32 v%d, s36, v%d" % (VBa, VL16))
    A.e("s_lshl_b32 s36, s32, 2"); A.e("s_lshl_b32 s37, s34, 1"); A.e("s_add_u32 s36, s36, s37"); A.e("s_mul_i32 s36, s36, 36")
    A.e("s_mul_i32 s37, s33, 12"); A.e("s_add_u32 s36, s36, s37"); A.e("s_mul_i32 s37, s35, 6"); A.e("s_add_u32 s36, s36, s37")
    A.e("s_lshl_b32 s36, s36, 10")
    A.e("s_mul_i32 s37, s15, %d" % G.PSET); A.e("s_add_u32 s36, s36, s37"); A.e("s_add_u32 s36, s36, 0x%x" % G.PART)
    NK = NST * 4
    cur_slot = {"s": 0}
    def reads(n):
        S, ks = divmod(n, 4)
        fb = FB + 20 * (n % 2)
        out = []
        def rb(i):
            return lambda: A.lds("ds_read_b128 %s, v%d offset:%d" % (v(fb + 4 * i, 4), VBa, i * 4096 + ks * 1024), ("b", n, i))
        def ra(t, rr):
            return lambda: A.lds("ds_read_b64_tr_b16 %s, v%d offset:%d" % (v(fb + 8 + 4 * t + 2 * rr, 2), VAa + t, (2 * ks + rr) * 1024), ("a", n, t))
        return [rb(0), ra(0, 0), ra(0, 1), rb(1), ra(1, 0), ra(1, 1), ra(2, 0), ra(2, 1)]
    def advance(S):
        d = (S % 4) * SLOT - ((S - 1) % 4) * SLOT
        for r in (VAa, VAa + 1, VAa + 2, VBa):
            if d > 0: A.e("v_add_u32 v%d, 0x%x, v%d" % (r, d, r))
            else: A.e("v_subrev_u32 v%d, 0x%x, v%d" % (r, -d, r))
    A.e("s_barrier")
    G.stamp_mid(A, opt)
    for f in reads(0): f()
    for n in range(NK):
        fb = FB + 20 * (n % 2)
        nxt = reads(n + 1) if n + 1 < NK else []
        newstage = (n + 1) % 4 == 0 and n + 1 < NK
        order = [(0, 0), (1, 0), (0, 1), (1, 1), (0, 2), (1, 2)]
        if newstage: sched = [0, 0, 3, 2, 2, 1]
        else: sched = [2, 2, 1, 1, 1, 1]
        for m, (i, t) in enumerate(order):
            A.wait(lg=[("b", n, i), ("a", n, t)])
            a = ACC + (i * 3 + t) * 16
            A.e("v_mfma_f32_32x32x16_bf16 %s, %s, %s, %s" % (v(a, 16), v(fb + 8 + 4 * t, 4), v(fb + 4 * i, 4), "0" if n == 0 else v(a, 16)))
            if newstage and m == 1:
                advance((n + 1) // 4)
                A.wait(lg_all=True)
                A.e("s_barrier")
            for _ in range(sched[m]):
                if nxt: nxt.pop(0)()
        assert not nxt
    A.e("s_nop 7"); A.e("s_nop 3")
    for t in range(3):
        for i in range(2):
            a = ACC + (i * 3 + t) * 16
            for j in range(8): A.e("v_cvt_pk_bf16_f32 v%d, v%d, v%d" % (a + j, a + 2 * j, a + 2 * j + 1))
            A.e("s_add_u32 s37, s36, %d" % ((i * 36 + 2 * t) * 1024))
            A.vmem("buffer_store_dwordx4 %s, v%d, s[24:27], s37 offen" % (v(a, 4), VL16))
            A.vmem("buffer_store_dwordx4 %s, v%d, s[24:27], s37 offen offset:1024" % (v(a + 4, 4), VL16))
    G.stamp_end(A, opt, 2, 100, 12)
    A.e("s_endpgm")
    A.label("K2_FLOAD")
    A.reset()
    A.e("s_sub_u32 s34, s12, 4")
    A.e("s_lshl_b32 s35, s32, 2"); A.e("s_add_u32 s35, s35, s34"); A.e("s_mul_i32 s35, s35, 288"); A.e("s_mul_i32 s36, s15, 72"); A.e("s_add_u32 s35, s35, s36")
    A.e("s_lshl_b32 s35, s35, 10"); A.e("s_add_u32 s35, s35, 0x%x" % G.HF)
    A.e("s_lshl_b32 s36, s34, 12")
    A.e("s_mul_i32 s37, s15, 1152"); A.e("s_lshl_b32 s38, s34, 4"); A.e("s_add_u32 s37, s37, s38"); A.e("s_mul_i32 s37, s37, 1152")
    A.e("s_mul_i32 s38, s33, 384"); A.e("s_add_u32 s37, s37, s38")
    A.e("s_lshl_b32 s38, s34, 11"); A.e("s_add_u32 s38, s38, 16384")
    def issue(S):
        sl = (S % 4) * SLOT
        A.e("s_add_u32 m0, s36, 0x%x" % sl)
        A.e("s_nop 0")
        for k in range(4):
            A.vmem("buffer_load_dwordx4 v%d, s[24:27], s35 offen offset:%d lds" % (VL16, k * 1024), ("d", S))
        A.e("s_add_u32 s35, s35, 4096")
        for e in range(2):
            for j in range(3):
                A.e("s_add_u32 m0, s38, 0x%x" % (sl + j * 8192 + e * 1024))
                A.e("s_add_u32 s39, s37, %d" % (e * 8 * 1152 + j * 128))
                A.vmem("buffer_load_dwordx4 v%d, s[16:19], s39 offen lds" % VW, ("d", S))
        A.e("s_add_u32 s37, s37, %d" % (64 * 1152))
    issue(0); issue(1)
    nxt = 2
    for S in range(NST):
        A.wait(vm=("d", S))
        A.e("s_barrier")
        lim = min(NST - 1, S + 3)
        while nxt <= lim:
            issue(nxt); nxt += 1
    A.e("s_endpgm")

    A.label("K2_ATT")
    A.reset()
    A.e("s_and_b32 s15, s13, 1")
    A.e("s_lshr_b32 s32, s13, 1"); A.e("s_lshl_b32 s32, s32, 3"); A.e("s_add_u32 s32, s32, s14"); A.e("s_sub_u32 s32, s32, 24")
    KB = 73728; VB = KB + 72 * 624
    A.e("s_mul_i32 s33, s15, 72"); A.e("s_mul_i32 s34, s12, 9"); A.e("s_add_u32 s33, s33, s34")
    A.e("s_lshl_b32 s33, s33, 14"); A.e("s_lshl_b32 s35, s32, 9"); A.e("s_add_u32 s33, s33, s35"); A.e("s_add_u32 s33, s33, 0x%x" % G.QKV)
    A.e("s_mul_i32 s36, s34, 624")
    Q = 0
    KV = 20
    LG = 60
    O = 80
    P = 120
    VL8 = 156; VKA = 157; VROW = 158
    A.e("v_lshlrev_b32 v%d, 3, v%d" % (VL8, L))
    A.e("s_mov_b32 exec_lo, -1"); A.e("s_mov_b32 exec_hi, 0x7f")
    for which in range(2):
        for c in range(9):
            A.e("s_add_u32 m0, s36, %d" % ((KB if which == 0 else VB) + c * 624))
            A.e("s_add_u32 s37, s33, 0x%x" % ((144 * (which + 1) + c) * 16384 - 112))
            A.vmem("buffer_load_dwordx4 v%d, s[24:27], s37 offen lds" % VL16, "k" if which == 0 else "v")
        if which == 0:
            A.e("s_mov_b64 exec, -1")
            for c in range(9):
                A.e("s_add_u32 s37, s33, 0x%x" % (c * 16384))
                A.vmem("buffer_load_dwordx2 %s, v%d, s[24:27], s37 offen" % (v(Q + 2 * c, 2), VL8), "q")
            A.e("s_mov_b32 exec_hi, 0x7f")
    A.e("s_mov_b64 exec, -1")
    A.e("s_mul_i32 s38, s15, 288"); A.e("s_lshl_b32 s39, s12, 3"); A.e("s_add_u32 s38, s38, s39"); A.e("s_mul_i32 s38, s38, 1152")
    A.e("s_lshr_b32 s39, s12, 2"); A.e("s_mul_i32 s39, s39, 36864"); A.e("s_and_b32 s40, s12, 3"); A.e("s_lshl_b32 s40, s40, 10"); A.e("s_add_u32 s39, s39, s40")
    for j in range(9):
        A.e("s_add_u32 m0, s39, %d" % (j * 4096))
        A.e("s_add_u32 s37, s38, %d" % (j * 128))
        A.vmem("buffer_load_dwordx4 v%d, s[20:23], s37 offen lds" % VW, "wo01")
    A.e("v_add_u32 v%d, s36, v%d" % (VKA, VL8))
    A.e("v_add_u32 v%d, %d, v%d" % (VKA, KB, VKA))
    A.e("s_lshl_b32 s41, s32, 6")
    A.e("v_add_u32 v%d, s41, v%d" % (VROW, L))
    A.e("s_mov_b32 s42, 0x%x" % G.f2u(18 ** -0.5 * 1.4426950408889634))
    A.e("v_mov_b32 v%d, 0x%x" % (T + 2, G.f2u(-1e9)))
    def rd(which, w_):
        b = KV + 18 * (w_ % 2)
        for c in range(9):
            A.lds("ds_read_b64 %s, v%d offset:%d" % (v(b + 2 * c, 2), VKA, (0 if which == 0 else VB - KB) + c * 624 + (14 - 2 * w_) * 8), (which, w_))
    A.wait(vm="q")
    G.stamp_mid(A, opt)
    rd(0, 0)
    for w_ in range(8):
        b = KV + 18 * (w_ % 2)
        A.wait(lg=(0, w_))
        if w_ < 7: rd(0, w_ + 1)
        for d in range(9):
            for hd in range(2):
                r = hd * 9 + d
                lg = LG + hd * 8 + w_
                A.e("v_dot2_f32_bf16 v%d, v%d, v%d, %s" % (lg, Q + r, b + r, "0" if d == 0 else "v%d" % lg))
    A.wait(vm="v")
    rd(1, 0)
    A.e("s_nop 1")
    for w_ in range(1, 8):
        A.e("v_cmp_le_u32 vcc, %d, v%d" % (2 * w_, VROW))
        A.e("s_nop 1")
        for hd in range(2):
            lg = LG + hd * 8 + w_
            A.e("v_cndmask_b32 v%d, v%d, v%d, vcc" % (lg, T + 2, lg))
    for hd in range(2):
        lg = LG + hd * 8; m = T + 3 + hd
        A.e("v_max3_f32 v%d, v%d, v%d, v%d" % (m, lg, lg + 1, lg + 2))
        A.e("v_max3_f32 v%d, v%d, v%d, v%d" % (m, m, lg + 3, lg + 4))
        A.e("v_max3_f32 v%d, v%d, v%d, v%d" % (m, m, lg + 5, lg + 6))
        A.e("v_max_f32 v%d, v%d, v%d" % (m, m, lg + 7))
    for hd in range(2):
        for w_ in range(8):
            lg = LG + hd * 8 + w_
            A.e("v_sub_f32 v%d, v%d, v%d" % (lg, lg, T + 3 + hd))
    for k in range(16): A.e("v_mul_f32 v%d, s42, v%d" % (LG + k, LG + k))
    for k in range(16): A.e("v_exp_f32 v%d, v%d" % (LG + k, LG + k))
    for hd in range(2):
        lg = LG + hd * 8; sm = T + 5 + hd
        A.e("v_add_f32 v%d, v%d, v%d" % (sm, lg, lg + 1))
    for w_ in range(2, 8):
        for hd in range(2):
            A.e("v_add_f32 v%d, v%d, v%d" % (T + 5 + hd, T + 5 + hd, LG + hd * 8 + w_))
    A.e("v_rcp_f32 v%d, v%d" % (T + 5, T + 5)); A.e("v_rcp_f32 v%d, v%d" % (T + 6, T + 6))
    A.e("v_mov_b32 v%d, 0" % (T + 7))
    for k in range(16): A.e("v_mul_f32 v%d, v%d, v%d" % (LG + k, LG + k, T + 5 + k // 8))
    for k in range(16):
        A.e("v_cvt_pk_bf16_f32 v%d, v%d, v%d" % (P + 2 * k, LG + k, T + 7))
        A.e("v_cvt_pk_bf16_f32 v%d, v%d, v%d" % (P + 2 * k + 1, T + 7, LG + k))
    for w_ in range(8):
        b = KV + 18 * (w_ % 2)
        A.wait(lg=(1, w_))
        if w_ < 7: rd(1, w_ + 1)
        for r in range(18):
            hd = r // 9
            for e in range(2):
                o = O + 2 * r + e
                A.e("v_dot2_f32_bf16 v%d, v%d, v%d, %s" % (o, b + r, P + 2 * (hd * 8 + w_) + e, "0" if w_ == 0 else "v%d" % o))
    A.e("s_nop 2")
    for r in range(18): A.e("v_cvt_pk_bf16_f32 v%d, v%d, v%d" % (Q + r, O + 2 * r, O + 2 * r + 1))
    for c in range(9):
        A.lds("ds_write_b64 v%d, %s offset:%d" % (VKA, v(Q + 2 * c, 2), c * 624), "ow")
    A.wait(vm_all=True, lg_all=True)
    A.e("s_barrier")
    A.e("s_cmp_ge_u32 s12, 4")
    A.e("s_cbranch_scc1 K2_ALOAD")
    slots = [0, 36864, VB]
    ACC = 0
    BF = 144
    AF = 152
    D = 4; NB = 5
    VA0 = 176; VA1 = 177; VBo = 178
    A.e("s_and_b32 s34, s12, 1"); A.e("s_lshr_b32 s35, s12, 1")
    A.e("s_cmp_eq_u32 s35, 0")
    A.e("s_cselect_b64 vcc, -1, 0")
    A.e("v_cndmask_b32 v%d, v%d, v%d, vcc" % (VA0, VT1, VT0))
    A.e("v_cndmask_b32 v%d, v%d, v%d, vcc" % (VA1, VT0, VT1))
    A.e("s_cselect_b32 s37, 0, %d" % (4 * 4096)); A.e("v_add_u32 v%d, s37, v%d" % (VA0, VA0))
    A.e("s_cselect_b32 s37, 0, %d" % (5 * 4096)); A.e("v_add_u32 v%d, s37, v%d" % (VA1, VA1))
    A.e("v_and_b32 v%d, 31, v%d" % (VBo, L)); A.e("v_lshlrev_b32 v%d, 3, v%d" % (VBo, VBo))
    A.e("v_bfe_u32 v%d, v%d, 5, 1" % (T + 3, L)); A.e("v_mul_u32_u24 v%d, 624, v%d" % (T + 3, T + 3)); A.e("v_add_u32 v%d, v%d, v%d" % (VBo, T + 3, VBo))
    A.e("s_lshl_b32 s37, s34, 8"); A.e("s_add_u32 s37, s37, %d" % KB); A.e("v_add_u32 v%d, s37, v%d" % (VBo, VBo))
    A.e("s_lshl_b32 s36, s32, 1"); A.e("s_add_u32 s36, s36, s34"); A.e("s_mul_i32 s36, s36, 36"); A.e("s_mul_i32 s37, s35, 18"); A.e("s_add_u32 s36, s36, s37")
    A.e("s_lshl_b32 s36, s36, 10"); A.e("s_mul_i32 s37, s15, %d" % G.PSET); A.e("s_add_u32 s36, s36, s37"); A.e("s_add_u32 s36, s36, 0x%x" % (G.PART + 4 * G.PSET))
    seq = [(ks, t) for ks in range(18) for t in range(9)]
    N = len(seq)
    cur = {"base": 0}
    done_bar = set()
    def ereads(i):
        ks, t = seq[i]
        S, kk = divmod(ks, 2)
        if t == 0:
            if slots[S % 3] != cur["base"]:
                d = slots[S % 3] - cur["base"]
                for r in (VA0, VA1):
                    if d > 0: A.e("v_add_u32 v%d, 0x%x, v%d" % (r, d, r))
                    else: A.e("v_subrev_u32 v%d, 0x%x, v%d" % (r, -d, r))
                cur["base"] = slots[S % 3]
            for rr in range(2):
                A.lds("ds_read_b64 %s, v%d offset:%d" % (v(BF + 4 * (ks % 2) + 2 * rr, 2), VBo, (4 * ks + 2 * rr) * 624), ("a", i))
        for rr in range(2):
            A.lds("ds_read_b64_tr_b16 %s, v%d offset:%d" % (v(AF + 4 * (i % NB) + 2 * rr, 2), VA1 if t % 2 else VA0, (t // 2) * 4096 + (2 * kk + rr) * 1024), ("a", i))
    nread = 0
    for i in range(D): ereads(nread); nread += 1
    for i in range(N):
        ks, t = seq[i]
        A.wait(lg=("a", i))
        a = ACC + 16 * t
        A.e("v_mfma_f32_32x32x16_bf16 %s, %s, %s, %s" % (v(a, 16), v(AF + 4 * (i % NB), 4), v(BF + 4 * (ks % 2), 4), "0" if ks == 0 else v(a, 16)))
        target = min(N, i + D + 1)
        while nread < target:
            if nread % 18 == 0 and nread not in done_bar:
                if nread > i + D - 1: break
                A.wait(lg_all=True); A.e("s_barrier"); done_bar.add(nread)
            ereads(nread); nread += 1
    A.e("s_nop 7"); A.e("s_nop 3")
    for t in range(9):
        a = ACC + 16 * t
        for j in range(8): A.e("v_cvt_pk_bf16_f32 v%d, v%d, v%d" % (a + j, a + 2 * j, a + 2 * j + 1))
        A.e("s_add_u32 s37, s36, %d" % (2 * t * 1024))
        A.vmem("buffer_store_dwordx4 %s, v%d, s[24:27], s37 offen" % (v(a, 4), VL16))
        A.vmem("buffer_store_dwordx4 %s, v%d, s[24:27], s37 offen offset:1024" % (v(a + 4, 4), VL16))
    G.stamp_end(A, opt, 2, 180, 12)
    A.e("s_endpgm")
    A.label("K2_ALOAD")
    A.reset()
    def aissue(S):
        for j in range(9):
            A.e("s_add_u32 m0, s40, %d" % (slots[S % 3] + j * 4096))
            A.e("s_add_u32 s37, s38, %d" % ((S - 1) * 32 * 1152 + j * 128))
            A.vmem("buffer_load_dwordx4 v%d, s[20:23], s37 offen lds" % VW, ("d", S))
    aissue(2)
    for S in range(1, 9):
        A.wait(vm=("d", S))
        A.e("s_barrier")
        if S + 2 <= 8: aissue(S + 2)
    A.label("K2_END")
    A.e("s_endpgm")
    return kernel_desc("k2_gemm2_kernel", 256, 102 if opt.get("stamp") else 64)

def gen_k3(A, opt):
    kernel_begin(A, "k3_reduce_kernel")
    A.e("s_cmp_ge_u32 s2, 256")
    A.e("s_cbranch_scc1 K3_END")
    G.stamp_begin(A, opt); G.stamp_mid(A, opt)
    A.e("s_load_dwordx2 s[4:5], s[0:1], 0")
    A.e("s_load_dwordx2 s[8:9], s[0:1], 56")
    A.e("s_load_dwordx2 s[6:7], s[0:1], 72")
    A.e("v_lshrrev_b32 v1, 6, v0")
    A.e("v_and_b32 v2, 63, v0")
    A.e("v_readfirstlane_b32 s12, v1")
    A.e("s_mul_i32 s13, s2, 9"); A.e("s_add_u32 s13, s13, s12"); A.e("s_lshl_b32 s13, s13, 10"); A.e("s_add_u32 s13, s13, 0x%x" % G.PART)
    A.e("v_lshlrev_b32 v3, 4, v2")
    A.e("s_lshr_b32 s14, s2, 2"); A.e("s_mul_i32 s14, s14, %d" % (32 * 1152))
    A.e("s_and_b32 s15, s2, 3"); A.e("s_mul_i32 s15, s15, 9"); A.e("s_add_u32 s15, s15, s12"); A.e("s_lshl_b32 s15, s15, 5"); A.e("s_add_u32 s14, s14, s15")
    A.e("v_and_b32 v4, 31, v2"); A.e("v_mul_u32_u24 v4, 1152, v4")
    A.e("v_lshrrev_b32 v5, 5, v2"); A.e("v_lshl_add_u32 v4, v5, 4, v4")
    A.e("s_waitcnt lgkmcnt(0)")
    srd(A, 16, 4, G.SZ_X); srd(A, 20, 8, G.SZ_X); srd(A, 24, 6, G.WS_SIZE)
    for k in range(6):
        A.vmem("buffer_load_dwordx4 %s, v3, s[24:27], s13 offen" % v(8 + 4 * k, 4), k)
        if k < 5: A.e("s_add_u32 s13, s13, %d" % G.PSET)
    A.vmem("buffer_load_dwordx4 v[32:35], v4, s[16:19], s14 offen", "x")
    for k in range(6):
        A.wait(vm=k)
        for j in range(4):
            r = 8 + 4 * k + j
            if k == 0:
                A.e("v_lshlrev_b32 v%d, 16, v%d" % (40 + 2 * j, r)); A.e("v_and_b32 v%d, 0xffff0000, v%d" % (41 + 2 * j, r))
            else:
                A.e("v_lshlrev_b32 v36, 16, v%d" % r); A.e("v_and_b32 v37, 0xffff0000, v%d" % r)
                A.e("v_add_f32 v%d, v%d, v36" % (40 + 2 * j, 40 + 2 * j)); A.e("v_add_f32 v%d, v%d, v37" % (41 + 2 * j, 41 + 2 * j))
    A.e("s_nop 1")
    for j in range(4): A.e("v_permlane32_swap_b32 v%d, v%d" % (40 + j, 44 + j))
    A.wait(vm="x")
    for j in range(4):
        A.e("v_lshlrev_b32 v36, 16, v%d" % (32 + j)); A.e("v_and_b32 v37, 0xffff0000, v%d" % (32 + j))
        A.e("v_add_f32 v%d, v%d, v36" % (40 + 2 * j, 40 + 2 * j)); A.e("v_add_f32 v%d, v%d, v37" % (41 + 2 * j, 41 + 2 * j))
    for j in range(4): A.e("v_cvt_pk_bf16_f32 v%d, v%d, v%d" % (8 + j, 40 + 2 * j, 41 + 2 * j))
    A.e("buffer_store_dwordx4 v[8:11], v4, s[20:23], s14 offen")
    if opt.get("stamp"): A.e("s_min_u32 s12, s12, 7")
    G.stamp_end(A, opt, 3, 12, 12)
    A.label("K3_END")
    A.e("s_endpgm")
    return kernel_desc("k3_reduce_kernel", 48, 102 if opt.get("stamp") else 32)

def add(A, opt, launches, descs):
    descs.append(gen_k2(A, opt)); launches.append("; @launch kernel=k2_gemm2_kernel grid=(256,1,1) block=(512,1,1) lds=163840")
    descs.append(gen_k3(A, opt)); launches.append("; @launch kernel=k3_reduce_kernel grid=(256,1,1) block=(576,1,1) lds=0")
```

```python
import sys
from asmlib import *

NAME = "parallel_sum__sliding_local_dilated__glu_gated_swiglu__prompt"
XNF  = 0x0000000
HF   = 0x0300000
QKV  = 0x1600000
PART = 0x1E00000
PSET = 64 * 36 * 1024
WS_SIZE = PART + 6 * PSET
SZ_X = 2048 * 576 * 2
SZ_WQKV = 576 * 1728 * 2
SZ_WO = 576 * 576 * 2
SZ_W = 576 * 4608 * 2
LOG2E = 0x3fb8aa3b
NLOG2E = 0xbfb8aa3b

def f2u(x):
    import struct
    return struct.unpack("<I", struct.pack("<f", x))[0]

STAMP = 0x3000000
def stamp_begin(A, opt):
    if not opt.get("stamp"): return
    A.e("s_memrealtime s[92:93]")
    A.e("s_memtime s[94:95]")
def stamp_mid(A, opt, idx=0):
    if not opt.get("stamp"): return
    A.e("s_memtime s[88:89]")
def stamp_end(A, opt, kid, vt, wave_sgpr=None):
    if not opt.get("stamp"): return
    A.e("s_waitcnt vmcnt(0) lgkmcnt(0)")
    A.e("s_memrealtime s[96:97]")
    A.e("s_memtime s[98:99]")
    A.e("s_load_dwordx2 s[84:85], s[0:1], 72")
    A.e("s_waitcnt lgkmcnt(0)")
    A.e("s_mov_b32 s80, s84"); A.e("s_and_b32 s81, s85, 0xffff"); A.e("s_mov_b32 s82, 0x10000000"); A.e("s_mov_b32 s83, 0x00020000")
    A.e("s_lshl_b32 s86, s2, 8")
    if wave_sgpr is not None:
        A.e("s_lshl_b32 s87, s%d, 5" % wave_sgpr); A.e("s_add_u32 s86, s86, s87")
    A.e("s_add_u32 s86, s86, 0x%x" % (STAMP + kid * 65536))
    A.e("s_sub_u32 s98, s98, s94")
    A.e("s_sub_u32 s88, s88, s94")
    A.e("v_mov_b32 v%d, s92" % vt); A.e("v_mov_b32 v%d, s96" % (vt + 1)); A.e("v_mov_b32 v%d, s98" % (vt + 2)); A.e("v_mov_b32 v%d, s88" % (vt + 3))
    A.e("v_mov_b32 v%d, 0" % (vt + 4))
    A.e("s_mov_b64 exec, 1")
    A.e("buffer_store_dwordx4 v[%d:%d], v%d, s[80:83], s86 offen" % (vt, vt + 3, vt + 4))

def gen_k0(A, opt):
    kernel_begin(A, "k0_ln_kernel")
    A.e("s_cmp_ge_u32 s2, 256")
    A.e("s_cbranch_scc1 K0_END")
    stamp_begin(A, opt); stamp_mid(A, opt)
    A.e("s_load_dwordx2 s[4:5], s[0:1], 0")
    A.e("s_load_dwordx2 s[6:7], s[0:1], 72")
    A.e("v_lshrrev_b32 v1, 5, v0")
    A.e("v_and_b32 v2, 31, v0")
    A.e("s_lshl_b32 s3, s2, 3")
    A.e("v_add_u32 v1, s3, v1")
    A.e("v_mul_u32_u24 v3, 1152, v1")
    A.e("v_lshl_add_u32 v3, v2, 4, v3")
    A.e("v_cmp_gt_u32 vcc, 8, v2")
    A.e("s_mov_b64 s[20:21], vcc")
    A.e("s_waitcnt lgkmcnt(0)")
    srd(A, 8, 4, SZ_X)
    srd(A, 12, 6, WS_SIZE)
    for r in range(16, 20): pass
    for i in range(12, 16): pass
    A.e("v_mov_b32 v16, 0"); A.e("v_mov_b32 v17, 0"); A.e("v_mov_b32 v18, 0"); A.e("v_mov_b32 v19, 0")
    A.e("buffer_load_dwordx4 v[8:11], v3, s[8:11], 0 offen")
    A.e("buffer_load_dwordx4 v[12:15], v3, s[8:11], 0 offen offset:512")
    A.e("s_mov_b64 exec, s[20:21]")
    A.e("buffer_load_dwordx4 v[16:19], v3, s[8:11], 0 offen offset:1024")
    A.e("s_mov_b64 exec, -1")
    A.e("v_lshrrev_b32 v4, 5, v1")
    A.e("v_mul_u32_u24 v4, 36, v4")
    A.e("v_lshrrev_b32 v5, 1, v2")
    A.e("v_add_u32 v4, v4, v5")
    A.e("v_lshlrev_b32 v4, 6, v4")
    A.e("v_and_b32 v5, 1, v2")
    A.e("v_lshl_add_u32 v4, v5, 5, v4")
    A.e("v_and_b32 v5, 31, v1")
    A.e("v_add_u32 v4, v4, v5")
    A.e("v_lshlrev_b32 v4, 4, v4")
    A.e("s_mov_b32 s16, 0x%x" % (XNF))
    A.e("s_mov_b32 s17, 0x%x" % (XNF + 16384))
    A.e("s_mov_b32 s18, 0x%x" % (XNF + 32768))
    A.e("s_mov_b32 s19, 0x%x" % f2u(1.0 / 576.0))
    A.e("s_waitcnt vmcnt(0)")
    for i in range(12):
        A.e("v_lshlrev_b32 v%d, 16, v%d" % (24 + 2 * i, 8 + i))
        A.e("v_and_b32 v%d, 0xffff0000, v%d" % (25 + 2 * i, 8 + i))
    def reduce32(r, t):
        A.e("s_nop 1")
        A.e("v_add_f32_dpp v%d, v%d, v%d quad_perm:[1,0,3,2] row_mask:0xf bank_mask:0xf" % (r, r, r))
        A.e("s_nop 1")
        A.e("v_add_f32_dpp v%d, v%d, v%d quad_perm:[2,3,0,1] row_mask:0xf bank_mask:0xf" % (r, r, r))
        A.e("s_nop 1")
        A.e("v_add_f32_dpp v%d, v%d, v%d row_half_mirror row_mask:0xf bank_mask:0xf" % (r, r, r))
        A.e("s_nop 1")
        A.e("v_add_f32_dpp v%d, v%d, v%d row_mirror row_mask:0xf bank_mask:0xf" % (r, r, r))
        A.e("v_mov_b32 v%d, v%d" % (t, r))
        A.e("s_nop 1")
        A.e("v_permlane16_swap_b32 v%d, v%d" % (r, t))
        A.e("s_nop 1")
        A.e("v_add_f32 v%d, v%d, v%d" % (r, r, t))
    A.e("v_add_f32 v6, v24, v25")
    A.e("v_add_f32 v7, v26, v27")
    for i in range(4, 24, 2):
        A.e("v_add_f32 v6, v6, v%d" % (24 + i))
        A.e("v_add_f32 v7, v7, v%d" % (25 + i))
    A.e("v_add_f32 v6, v6, v7")
    reduce32(6, 7)
    A.e("v_mul_f32 v6, s19, v6")
    A.e("v_mov_b32 v20, 0"); A.e("v_mov_b32 v21, 0")
    for i in range(0, 24, 2):
        if i == 16: A.e("s_mov_b64 exec, s[20:21]")
        A.e("v_sub_f32 v22, v%d, v6" % (24 + i))
        A.e("v_sub_f32 v23, v%d, v6" % (25 + i))
        A.e("v_fmac_f32 v20, v22, v22")
        A.e("v_fmac_f32 v21, v23, v23")
    A.e("s_mov_b64 exec, -1")
    A.e("v_add_f32 v20, v20, v21")
    reduce32(20, 21)
    A.e("v_mul_f32 v20, s19, v20")
    def rbf(r):
        A.e("v_cvt_pk_bf16_f32 v%d, v%d, v%d" % (r, r, r))
        A.e("v_and_b32 v%d, 0xffff0000, v%d" % (r, r))
    rbf(6); rbf(20)
    A.e("v_add_f32 v20, 0x%x, v20" % f2u(1e-5))
    rbf(20)
    A.e("v_sqrt_f32 v20, v20")
    A.e("s_nop 0")
    rbf(20)
    A.e("v_rcp_f32 v20, v20")
    for i in range(12):
        a, b = 24 + 2 * i, 25 + 2 * i
        A.e("v_sub_f32 v%d, v%d, v6" % (a, a))
        A.e("v_sub_f32 v%d, v%d, v6" % (b, b))
        A.e("v_cvt_pk_bf16_f32 v22, v%d, v%d" % (a, b))
        A.e("v_lshlrev_b32 v%d, 16, v22" % a)
        A.e("v_and_b32 v%d, 0xffff0000, v22" % b)
        A.e("v_mul_f32 v%d, v%d, v20" % (a, a))
        A.e("v_mul_f32 v%d, v%d, v20" % (b, b))
        A.e("v_cvt_pk_bf16_f32 v%d, v%d, v%d" % (8 + i, a, b))
    A.e("buffer_store_dwordx4 v[8:11], v4, s[12:15], s16 offen")
    A.e("buffer_store_dwordx4 v[12:15], v4, s[12:15], s17 offen")
    A.e("s_mov_b64 exec, s[20:21]")
    A.e("buffer_store_dwordx4 v[16:19], v4, s[12:15], s18 offen")
    stamp_end(A, opt, 0, 24)
    A.label("K0_END")
    A.e("s_endpgm")
    return kernel_desc("k0_ln_kernel", 48, 102 if opt.get("stamp") else 32)

def gen_k1(A, opt):
    D = opt.get("k1_D", 4)
    NB = D + 1
    kernel_begin(A, "k1_gemm1_kernel")
    XF = 0
    ACC = 144
    AB = 208
    VA = 232
    VQ = 236
    VO = 239
    VL16 = 242
    VQS = 243
    T = 244
    assert NB * 4 <= 24
    A.e("s_cmp_ge_u32 s2, 256")
    A.e("s_cbranch_scc1 K1_END")
    stamp_begin(A, opt)
    A.e("s_load_dwordx2 s[4:5], s[0:1], 8")
    A.e("s_load_dwordx4 s[8:11], s[0:1], 32")
    A.e("s_load_dwordx2 s[6:7], s[0:1], 72")
    A.e("v_lshrrev_b32 v%d, 6, v0" % T)
    A.e("v_and_b32 v%d, 63, v0" % (T + 1))
    A.e("v_readfirstlane_b32 s12, v%d" % T)
    L = T + 1
    A.e("s_and_b32 s13, s2, 7")
    A.e("s_lshr_b32 s14, s2, 3")
    if opt.get("k1_map", 0) == 0:
        A.e("s_lshr_b32 s15, s13, 2"); A.e("s_lshl_b32 s15, s15, 2"); A.e("s_and_b32 s32, s14, 3"); A.e("s_add_u32 s15, s15, s32")
        A.e("s_and_b32 s32, s13, 3"); A.e("s_lshl_b32 s32, s32, 3"); A.e("s_lshr_b32 s33, s14, 2"); A.e("s_add_u32 s32, s32, s33")
    else:
        A.e("s_and_b32 s15, s14, 7")
        A.e("s_lshl_b32 s32, s13, 2"); A.e("s_lshr_b32 s33, s14, 3"); A.e("s_add_u32 s32, s32, s33")
    SMT, SG = 15, 32
    A.e("s_lshl_b32 s33, s%d, 3" % SMT); A.e("s_add_u32 s33, s33, s12")
    A.e("v_lshlrev_b32 v%d, 4, v%d" % (VL16, L))
    A.e("s_mul_i32 s34, s%d, 9" % SG)
    A.e("s_add_u32 s35, s34, 3"); A.e("s_and_b32 s35, s35, 0xfffffffc")
    A.e("s_sub_u32 s36, s35, s34")
    A.e("s_cmp_eq_u32 s36, 1"); A.e("s_cselect_b32 s37, 1, 0")
    for t in range(4):
        A.e("s_add_u32 s%d, s35, %d" % (40 + t, t))
    for t in range(4):
        A.e("s_add_u32 s38, s37, %d" % t)
        A.e("s_cmp_ge_u32 s38, s36"); A.e("s_cselect_b32 s39, 4, 0")
        A.e("s_add_u32 s38, s38, s39"); A.e("s_add_u32 s%d, s38, s34" % (44 + t))
    A.e("s_cmp_eq_u32 s36, 1"); A.e("s_cselect_b32 s38, 0, 8"); A.e("s_add_u32 s48, s38, s34")
    A.e("s_and_b32 s38, s12, 1")
    A.e("s_lshl_b32 s39, s38, 1")
    A.e("v_lshrrev_b32 v%d, 3, v%d" % (T + 2, L))
    A.e("v_bfe_u32 v%d, v%d, 1, 2" % (T + 3, L))
    A.e("v_bfe_u32 v%d, v%d, 4, 1" % (T + 4, L))
    A.e("v_or_b32 v%d, s39, v%d" % (T + 5, T + 4))
    A.e("v_xor_b32 v%d, v%d, v%d" % (T + 5, T + 5, T + 3))
    A.e("s_lshr_b32 s39, s12, 1"); A.e("s_lshl_b32 s39, s39, 3")
    A.e("v_add_u32 v%d, s39, v%d" % (T + 6, T + 2))
    A.e("v_mul_u32_u24 v%d, 9216, v%d" % (T + 6, T + 6))
    A.e("v_and_b32 v%d, 1, v%d" % (T + 7, L))
    A.e("v_lshl_add_u32 v%d, v%d, 4, v%d" % (T + 6, T + 7, T + 6))
    A.e("v_add_u32 v%d, s35, v%d" % (VO, T + 5))
    A.e("v_lshl_add_u32 v%d, v%d, 5, v%d" % (VO, VO, T + 6))
    A.e("v_add_u32 v%d, s37, v%d" % (VO + 1, T + 5))
    A.e("v_cmp_le_u32 vcc, s36, v%d" % (VO + 1))
    A.e("v_add_u32 v%d, s34, v%d" % (VO + 1, VO + 1))
    A.e("v_add_u32 v%d, 4, v%d" % (VO + 2, VO + 1))
    A.e("v_cndmask_b32 v%d, v%d, v%d, vcc" % (VO + 1, VO + 1, VO + 2))
    A.e("v_lshl_add_u32 v%d, v%d, 5, v%d" % (VO + 1, VO + 1, T + 6))
    A.e("s_min_u32 s49, s%d, 26" % SG)
    A.e("v_lshlrev_b32 v%d, 1, v%d" % (T + 4, T + 4))
    A.e("v_xor_b32 v%d, v%d, v%d" % (T + 4, T + 4, T + 3))
    A.e("s_lshl_b32 s39, s12, 3")
    A.e("v_add_u32 v%d, s39, v%d" % (T + 2, T + 2))
    A.e("v_mul_u32_u24 v%d, 3456, v%d" % (T + 2, T + 2))
    A.e("v_lshl_add_u32 v%d, v%d, 5, v%d" % (T + 2, T + 4, T + 2))
    A.e("s_lshl_b32 s39, s49, 7")
    A.e("v_add_u32 v%d, s39, v%d" % (T + 2, T + 2))
    A.e("v_lshrrev_b32 v%d, 1, v%d" % (T + 3, L))
    A.e("v_mul_u32_u24 v%d, 9216, v%d" % (T + 3, T + 3))
    A.e("s_lshl_b32 s39, s48, 5")
    A.e("v_add_u32 v%d, s39, v%d" % (T + 3, T + 3))
    A.e("s_cmp_lt_u32 s12, 4")
    A.e("s_cselect_b64 vcc, -1, 0")
    A.e("v_cndmask_b32 v%d, v%d, v%d, vcc" % (VO + 2, T + 3, T + 2))
    A.e("v_lshl_add_u32 v%d, v%d, 4, v%d" % (VO + 2, T + 7, VO + 2))
    A.e("s_mov_b32 s51, %d" % (32 * 9216))
    A.e("s_cselect_b32 s51, %d, s51" % (32 * 3456))
    A.e("s_lshl_b32 s52, s12, 10")
    A.e("s_cmp_eq_u32 s12, 5"); A.e("s_cselect_b32 s53, %d, s52" % (5 * 1024 + 128))
    A.e("s_cmp_ge_u32 s12, 6"); A.e("s_cselect_b32 s53, %d, s53" % (7 * 1024))
    A.e("s_waitcnt lgkmcnt(0)")
    A.e("s_bitcmp1_b32 s12, 0")
    A.e("s_cselect_b64 s[16:17], s[10:11], s[8:9]")
    A.e("s_and_b32 s17, s17, 0xffff")
    A.e("s_mov_b32 s18, 0x%x" % SZ_W); A.e("s_mov_b32 s19, 0x00020000")
    A.e("s_cmp_lt_u32 s12, 4")
    A.e("s_cselect_b64 s[20:21], s[4:5], s[16:17]")
    A.e("s_cselect_b32 s22, 0x%x, s18" % SZ_WQKV)
    A.e("s_and_b32 s21, s21, 0xffff")
    A.e("s_cmp_ge_u32 s12, 6"); A.e("s_cselect_b32 s22, 0, s22")
    A.e("s_mov_b32 s23, 0x00020000")
    srd(A, 24, 6, WS_SIZE)
    srd(A, 28, 6, WS_SIZE)
    A.e("s_cmp_ge_u32 s%d, 27" % SG); A.e("s_cselect_b32 s30, 0, s30")
    A.e("s_mul_i32 s54, s33, %d" % (36 * 1024))
    if XNF: A.e("s_add_u32 s54, s54, 0x%x" % XNF)
    A.e("s_mov_b32 s50, 0")
    state = {"n": 0}
    def dma_issue(S, j):
        p, st = divmod(S, 6)
        ldsoff = st * 24576 + j * 8192
        base = 53 if p == 2 else 52
        def f():
            if S == 6 or S == 12:
                if j == 0: A.e("s_mov_b32 s50, 0")
            A.e("s_add_u32 m0, s%d, 0x%x" % (base, ldsoff))
            A.e("s_nop 0")
            A.vmem("buffer_load_dwordx4 v%d, s[%d:%d], s50 offen lds" % (VO + p, 20 if p == 2 else 16, 23 if p == 2 else 19), ("dma", S))
            if p == 2: A.e("s_add_u32 s50, s50, s51")
            else: A.e("s_add_u32 s50, s50, %d" % (32 * 9216))
        return f
    for S in range(6):
        for ks in range(6 * S, 6 * S + 6):
            if ks % 4 == 0 and ks > 0: A.e("s_add_u32 s54, s54, 4096")
            A.vmem("buffer_load_dwordx4 %s, v%d, s[24:27], s54 offen offset:%d" % (v(XF + 4 * ks, 4), VL16, (ks % 4) * 1024), ("x", ks))
        for j in range(3): dma_issue(S, j)()
    A.e("v_bfe_u32 v%d, v%d, 4, 1" % (T + 2, L))
    A.e("v_bfe_u32 v%d, v%d, 5, 1" % (T + 3, L))
    A.e("v_bfe_u32 v%d, v%d, 2, 2" % (T + 4, L))
    A.e("v_and_b32 v%d, 3, v%d" % (T + 5, L))
    A.e("v_lshlrev_b32 v%d, 3, v%d" % (T + 5, T + 5))
    A.e("v_lshl_add_u32 v%d, v%d, 7, v%d" % (T + 6, T + 4, T + 5))
    A.e("v_bfe_u32 v%d, v%d, 3, 1" % (T + 7, L))
    A.e("v_lshl_or_b32 v%d, v%d, 1, v%d" % (T, T + 2, T + 7))
    A.e("v_lshl_add_u32 v%d, v%d, 11, v%d" % (VQ, T + 3, T + 6))
    A.e("v_lshl_add_u32 v%d, v%d, 10, v%d" % (VQ, T + 2, VQ))
    for t in range(4):
        A.e("v_xor_b32 v%d, %d, v%d" % (VA + t, t, T))
        A.e("v_lshl_add_u32 v%d, v%d, 5, v%d" % (VA + t, VA + t, VQ))
    A.e("v_lshl_or_b32 v%d, v%d, 1, v%d" % (T, T + 7, T + 2))
    A.e("v_lshl_add_u32 v%d, v%d, 10, v%d" % (T + 6, T + 3, T + 6))
    A.e("v_lshl_add_u32 v%d, v%d, 5, v%d" % (VQ + 1, T, T + 6))
    A.e("v_xor_b32 v%d, 2, v%d" % (T, T))
    A.e("v_lshl_add_u32 v%d, v%d, 5, v%d" % (VQ + 2, T, T + 6))
    A.e("v_mul_u32_u24 v%d, 1152, v%d" % (VQ, T + 2))
    A.e("v_lshl_add_u32 v%d, v%d, 8, v%d" % (VQ, T + 3, VQ))
    A.e("v_lshl_add_u32 v%d, v%d, 5, v%d" % (VQ, T + 4, VQ))
    A.e("v_add_u32 v%d, v%d, v%d" % (VQ, T + 5, VQ))
    A.e("v_add_u32 v%d, 4096, v%d" % (VQ, VQ))
    A.e("v_and_b32 v%d, 31, v%d" % (VQS, L))
    A.e("v_lshlrev_b32 v%d, 3, v%d" % (VQS, VQS))
    A.e("v_lshl_add_u32 v%d, v%d, 14, v%d" % (VQS, T + 3, VQS))
    A.e("s_mul_i32 s55, s33, 288")
    for i in range(9):
        A.e("s_add_u32 s%d, s%d, s55" % (40 + i, 40 + i))
        A.e("s_lshl_b32 s%d, s%d, 10" % (40 + i, 40 + i))
        A.e("s_add_u32 s%d, s%d, 0x%x" % (40 + i, 40 + i, HF))
    A.e("s_lshl_b32 s56, s49, 18"); A.e("s_lshl_b32 s57, s33, 8"); A.e("s_add_u32 s56, s56, s57"); A.e("s_add_u32 s56, s56, 0x%x" % QKV)
    A.e("s_mov_b32 s58, 0x%x" % NLOG2E)

    seq = []
    groups = []
    for p in range(3):
        nt = 3 if p == 2 else 4
        if p == 0: gl = [[0], [1], [2], [3], [4, 5]]
        else: gl = [[0, 1], [2], [3], [4, 5]]
        for g in gl:
            groups.append((len(seq), [6 * p + st for st in g]))
            for t in range(nt):
                for st in g:
                    for kk6 in range(6):
                        seq.append((p, t, 6 * st + kk6))
    N = len(seq)
    gstart = {g[0]: gi for gi, g in enumerate(groups)}
    fill = [[] for _ in range(N + 40)]
    last = {}; first = {}
    for i, (p, t, ks) in enumerate(seq):
        last[(p, t)] = i
        first.setdefault((p, t), i)
    def ffn_epi(p, t):
        a = ACC + 16 * t
        ops = []
        sreg = 40 + 4 * p + t if p < 2 else 48
        for j in range(8):
            ops.append("v_mul_f32 v%d, v%d, v%d" % (a + 8 + j, a + j, a + 8 + j))
            ops.append("v_mul_f32 v%d, s58, v%d" % (a + j, a + j))
        for j in range(8): ops.append("v_exp_f32 v%d, v%d" % (a + j, a + j))
        for j in range(8): ops.append("v_add_f32 v%d, 1.0, v%d" % (a + j, a + j))
        for j in range(8): ops.append("v_rcp_f32 v%d, v%d" % (a + j, a + j))
        for j in range(8): ops.append("v_mul_f32 v%d, v%d, v%d" % (a + 8 + j, a + j, a + 8 + j))
        for j in range(4): ops.append("v_cvt_pk_bf16_f32 v%d, v%d, v%d" % (a + j, a + 8 + 2 * j, a + 9 + 2 * j))
        ops.append(("vm", "buffer_store_dwordx4 %s, v%d, s[24:27], s%d offen" % (v(a, 4), VL16, sreg)))
        return ops
    def qkv_epi(t):
        a = ACC + 16 * t
        ops = []
        for j in range(8): ops.append("v_cvt_pk_bf16_f32 v%d, v%d, v%d" % (a + j, a + 2 * j, a + 2 * j + 1))
        for q in range(4):
            ops.append("s_add_u32 s57, s56, 0x%x" % ((8 * (t - 1) + 2 * q) * 16384))
            ops.append(("vm", "buffer_store_dwordx2 %s, v%d, s[28:31], s57 offen" % (v(a + 2 * q, 2), VQS)))
        return ops
    cur = 0
    RATE = opt.get("k1_nsl", 16)
    tail_ops = []
    for p in range(3):
        for t in range(3 if p == 2 else 4):
            ops = ffn_epi(p, t) if (p < 2 or t == 0) else qkv_epi(t)
            start = max(cur, last[(p, t)] + 4)
            dead = first.get((p + 1, t), None)
            nsl = RATE if p < 2 else (len(ops) + 4) // 5
            for k, op in enumerate(ops):
                fill[start + k * nsl // len(ops)].append(op)
            pos = start + nsl
            cur = pos
            if dead is not None: assert pos - 1 < dead - 1, (p, t, pos, dead)
    awin = {}
    def areg(p, t):
        return (VQ + t) if p == 2 else (VA + t)
    def emit_reads(i):
        p, t, ks = seq[i]
        st, kk6 = divmod(ks, 6)
        ch, kk = divmod(kk6, 2)
        r = areg(p, t)
        win = (st // 2) * 49152
        curw = awin.get(r, 0)
        if win != curw:
            d = win - curw
            if d > 0: A.e("v_add_u32 v%d, 0x%x, v%d" % (r, d, r))
            else: A.e("v_subrev_u32 v%d, 0x%x, v%d" % (r, -d, r))
            awin[r] = win
        base = (st % 2) * 24576 + ch * 8192
        b = AB + 4 * (i % NB)
        for rr in range(2):
            if p < 2: off = base + kk * 4096 + rr * 512
            elif t == 0: off = base + kk * 512 + rr * 128
            else: off = base + kk * 2048 + rr * 512
            if opt.get("k1_noread"): continue
            if opt.get("k1_plainread"):
                A.lds("ds_read_b64 %s, v%d offset:%d" % (v(b + 2 * rr, 2), r, off), ("a", i)); continue
            A.lds("ds_read_b64_tr_b16 %s, v%d offset:%d" % (v(b + 2 * rr, 2), r, off), ("a", i))
    pend_dma = []
    def barrier_for(gi):
        stages = groups[gi][1]
        A.wait(vm=[("dma", S) for S in stages], lg_all=(gi > 0))
        if not opt.get("k1_nobar"): A.e("s_barrier")
        if gi > 0:
            for S in groups[gi - 1][1]:
                if S + 6 < 18 and not opt.get("k1_nodma"):
                    for j in range(3): pend_dma.append(dma_issue(S + 6, j))
    barrier_for(0)
    stamp_mid(A, opt)
    nread = 0
    for i in range(D):
        emit_reads(nread); nread += 1
    for i in range(N):
        p, t, ks = seq[i]
        A.wait(lg=("a", i), vm=("x", ks) if p == 0 else None)
        a = ACC + 16 * t
        c = "0" if first[(p, t)] == i else v(a, 16)
        if not opt.get("k1_nomfma"): A.e("v_mfma_f32_32x32x16_bf16 %s, %s, %s, %s" % (v(a, 16), v(AB + 4 * (i % NB), 4), v(XF + 4 * ks, 4), c))
        target = min(N, i + D + 1)
        while nread < target:
            if nread in gstart:
                if nread > i + D - 1 and ("bar", nread) not in state:
                    break
                if ("bar", nread) not in state:
                    barrier_for(gstart[nread]); state[("bar", nread)] = 1
            emit_reads(nread); nread += 1
        for op in fill[i]:
            if isinstance(op, tuple):
                if not opt.get("k1_nost"): A.vmem(op[1], "st")
            elif not opt.get("k1_noepi"): A.e(op)
        if pend_dma and i % 3 == 0:
            pend_dma.pop(0)()
    assert not pend_dma
    A.e("s_nop 7"); A.e("s_nop 3")
    for i in range(N, len(fill)):
        for op in fill[i]:
            if isinstance(op, tuple): A.vmem(op[1], "st")
            else: A.e(op)
    stamp_end(A, opt, 1, 0, 12)
    A.label("K1_END")
    A.e("s_endpgm")
    return kernel_desc("k1_gemm1_kernel", 256, 102 if opt.get("stamp") else 64)

HEADER = """; Kernarg layout for this problem (80 bytes, ptrs only, base s[0:1]):
"""

def build(opt):
    A = Asm()
    launches = []
    descs = []
    descs.append(gen_k0(A, opt)); launches.append("; @launch kernel=k0_ln_kernel grid=(256,1,1) block=(256,1,1) lds=0")
    descs.append(gen_k1(A, opt)); launches.append("; @launch kernel=k1_gemm1_kernel grid=(256,1,1) block=(512,1,1) lds=147456")
    try:
        import gen2
        gen2.add(A, opt, launches, descs)
    except ImportError:
        pass
    return HEADER + "\n".join(launches) + "\n" + '.amdgcn_target "amdgcn-amd-amdhsa--gfx950"\n' + A.text() + "".join(descs)

if __name__ == "__main__":
    opt = {}
    out = "cdna_kernels/%s.s" % NAME
    for a in sys.argv[1:]:
        if a.startswith("out="): out = a[4:]
        else:
            k, val = a.split("="); opt[k] = int(val)
    open(out, "w").write(build(opt))
    print("wrote", out)
```

```python
from asmlib import *
import gen as G

def gen_k2(A, opt):
    kernel_begin(A, "k2_gemm2_kernel")
    T = 240
    L = T + 1
    A.e("s_cmp_ge_u32 s2, 256")
    A.e("s_cbranch_scc1 K2_END")
    G.stamp_begin(A, opt)
    A.e("s_load_dwordx2 s[4:5], s[0:1], 48")
    A.e("s_load_dwordx2 s[8:9], s[0:1], 16")
    A.e("s_load_dwordx2 s[6:7], s[0:1], 72")
    A.e("v_lshrrev_b32 v%d, 6, v0" % T)
    A.e("v_and_b32 v%d, 63, v0" % L)
    A.e("v_readfirstlane_b32 s12, v%d" % T)
    A.e("s_and_b32 s13, s2, 7")
    A.e("s_lshr_b32 s14, s2, 3")
    VL16 = 238
    VW = 239
    A.e("v_lshlrev_b32 v%d, 4, v%d" % (VL16, L))
    A.e("v_lshrrev_b32 v%d, 3, v%d" % (T + 2, L))
    A.e("v_bfe_u32 v%d, v%d, 1, 2" % (T + 3, L))
    A.e("v_bfe_u32 v%d, v%d, 4, 1" % (T + 4, L))
    A.e("v_lshlrev_b32 v%d, 1, v%d" % (T + 4, T + 4))
    A.e("v_xor_b32 v%d, v%d, v%d" % (T + 3, T + 3, T + 4))
    A.e("v_mul_u32_u24 v%d, 1152, v%d" % (VW, T + 2))
    A.e("v_lshl_add_u32 v%d, v%d, 5, v%d" % (VW, T + 3, VW))
    A.e("v_and_b32 v%d, 1, v%d" % (T + 4, L))
    A.e("v_lshl_add_u32 v%d, v%d, 4, v%d" % (VW, T + 4, VW))
    VT0 = 236; VT1 = 237
    A.e("v_bfe_u32 v%d, v%d, 4, 1" % (T + 2, L))
    A.e("v_bfe_u32 v%d, v%d, 5, 1" % (T + 3, L))
    A.e("v_bfe_u32 v%d, v%d, 2, 2" % (T + 4, L))
    A.e("v_and_b32 v%d, 3, v%d" % (T + 5, L))
    A.e("v_lshlrev_b32 v%d, 3, v%d" % (T + 5, T + 5))
    A.e("v_lshl_add_u32 v%d, v%d, 7, v%d" % (T + 5, T + 4, T + 5))
    A.e("v_lshl_add_u32 v%d, v%d, 9, v%d" % (T + 5, T + 3, T + 5))
    A.e("v_bfe_u32 v%d, v%d, 3, 1" % (T + 6, L))
    A.e("v_lshl_or_b32 v%d, v%d, 1, v%d" % (T + 6, T + 6, T + 2))
    A.e("v_lshl_add_u32 v%d, v%d, 5, v%d" % (VT0, T + 6, T + 5))
    A.e("v_xor_b32 v%d, 64, v%d" % (VT1, VT0))
    A.e("s_waitcnt lgkmcnt(0)")
    srd(A, 16, 4, G.SZ_W)
    srd(A, 20, 8, G.SZ_WO)
    srd(A, 24, 6, G.WS_SIZE)
    A.e("s_cmp_ge_u32 s14, 24")
    A.e("s_cbranch_scc1 K2_ATT")
    A.e("s_and_b32 s15, s13, 3")
    A.e("s_lshr_b32 s32, s13, 2"); A.e("s_lshl_b32 s32, s32, 3"); A.e("s_and_b32 s33, s14, 7"); A.e("s_add_u32 s32, s32, s33")
    A.e("s_lshr_b32 s33, s14, 3")
    A.e("s_cmp_ge_u32 s12, 4")
    A.e("s_cbranch_scc1 K2_FLOAD")
    NST = 18
    SLOT = 40960
    ACC = 0
    FB = 96
    VAa = 140
    VBa = 143
    A.e("s_and_b32 s34, s12, 1"); A.e("s_lshr_b32 s35, s12, 1")
    A.e("s_cmp_eq_u32 s35, 0")
    A.e("s_cselect_b64 vcc, -1, 0")
    A.e("v_cndmask_b32 v%d, v%d, v%d, vcc" % (VAa, VT1, VT0))
    A.e("v_cndmask_b32 v%d, v%d, v%d, vcc" % (VAa + 1, VT0, VT1))
    A.e("v_mov_b32 v%d, v%d" % (VAa + 2, VAa))
    A.e("s_cselect_b32 s36, 0, 8192"); A.e("s_add_u32 s36, s36, 16384")
    A.e("v_add_u32 v%d, s36, v%d" % (VAa, VAa))
    A.e("s_cmp_eq_u32 s35, 0")
    A.e("s_cselect_b32 s36, 0, 16384"); A.e("s_add_u32 s36, s36, 16384")
    A.e("v_add_u32 v%d, s36, v%d" % (VAa + 1, VAa + 1))
    A.e("s_cmp_eq_u32 s35, 0")
    A.e("s_cselect_b32 s36, 0, 8192"); A.e("s_add_u32 s36, s36, %d" % (16384 + 8192))
    A.e("v_add_u32 v%d, s36, v%d" % (VAa + 2, VAa + 2))
    A.e("s_lshl_b32 s36, s34, 13")
    A.e("v_add_u32 v%d, s36, v%d" % (VBa, VL16))
    A.e("s_lshl_b32 s36, s32, 2"); A.e("s_lshl_b32 s37, s34, 1"); A.e("s_add_u32 s36, s36, s37"); A.e("s_mul_i32 s36, s36, 36")
    A.e("s_mul_i32 s37, s33, 12"); A.e("s_add_u32 s36, s36, s37"); A.e("s_mul_i32 s37, s35, 6"); A.e("s_add_u32 s36, s36, s37")
    A.e("s_lshl_b32 s36, s36, 10")
    A.e("s_mul_i32 s37, s15, %d" % G.PSET); A.e("s_add_u32 s36, s36, s37"); A.e("s_add_u32 s36, s36, 0x%x" % G.PART)
    NK = NST * 4
    cur_slot = {"s": 0}
    def reads(n):
        S, ks = divmod(n, 4)
        fb = FB + 20 * (n % 2)
        out = []
        def rb(i):
            return lambda: A.lds("ds_read_b128 %s, v%d offset:%d" % (v(fb + 4 * i, 4), VBa, i * 4096 + ks * 1024), ("b", n, i))
        def ra(t, rr):
            return lambda: A.lds("ds_read_b64_tr_b16 %s, v%d offset:%d" % (v(fb + 8 + 4 * t + 2 * rr, 2), VAa + t, (2 * ks + rr) * 1024), ("a", n, t))
        return [rb(0), ra(0, 0), ra(0, 1), rb(1), ra(1, 0), ra(1, 1), ra(2, 0), ra(2, 1)]
    def advance(S):
        d = (S % 4) * SLOT - ((S - 1) % 4) * SLOT
        for r in (VAa, VAa + 1, VAa + 2, VBa):
            if d > 0: A.e("v_add_u32 v%d, 0x%x, v%d" % (r, d, r))
            else: A.e("v_subrev_u32 v%d, 0x%x, v%d" % (r, -d, r))
    A.e("s_barrier")
    G.stamp_mid(A, opt)
    for f in reads(0): f()
    for n in range(NK):
        fb = FB + 20 * (n % 2)
        nxt = reads(n + 1) if n + 1 < NK else []
        newstage = (n + 1) % 4 == 0 and n + 1 < NK
        order = [(0, 0), (1, 0), (0, 1), (1, 1), (0, 2), (1, 2)]
        if newstage: sched = [0, 0, 3, 2, 2, 1]
        else: sched = [2, 2, 1, 1, 1, 1]
        for m, (i, t) in enumerate(order):
            A.wait(lg=[("b", n, i), ("a", n, t)])
            a = ACC + (i * 3 + t) * 16
            A.e("v_mfma_f32_32x32x16_bf16 %s, %s, %s, %s" % (v(a, 16), v(fb + 8 + 4 * t, 4), v(fb + 4 * i, 4), "0" if n == 0 else v(a, 16)))
            if newstage and m == 1:
                advance((n + 1) // 4)
                A.wait(lg_all=True)
                A.e("s_barrier")
            for _ in range(sched[m]):
                if nxt: nxt.pop(0)()
        assert not nxt
    A.e("s_nop 7"); A.e("s_nop 3")
    for t in range(3):
        for i in range(2):
            a = ACC + (i * 3 + t) * 16
            for j in range(8): A.e("v_cvt_pk_bf16_f32 v%d, v%d, v%d" % (a + j, a + 2 * j, a + 2 * j + 1))
            A.e("s_add_u32 s37, s36, %d" % ((i * 36 + 2 * t) * 1024))
            A.vmem("buffer_store_dwordx4 %s, v%d, s[24:27], s37 offen%s" % (v(a, 4), VL16, G.STF[opt.get("k2_st", 0)]))
            A.vmem("buffer_store_dwordx4 %s, v%d, s[24:27], s37 offen offset:1024%s" % (v(a + 4, 4), VL16, G.STF[opt.get("k2_st", 0)]))
    G.stamp_end(A, opt, 2, 100, 12)
    A.e("s_endpgm")
    A.label("K2_FLOAD")
    A.reset()
    A.e("s_sub_u32 s34, s12, 4")
    A.e("s_lshl_b32 s35, s32, 2"); A.e("s_add_u32 s35, s35, s34"); A.e("s_mul_i32 s35, s35, 288"); A.e("s_mul_i32 s36, s15, 72"); A.e("s_add_u32 s35, s35, s36")
    A.e("s_lshl_b32 s35, s35, 10"); A.e("s_add_u32 s35, s35, 0x%x" % G.HF)
    A.e("s_lshl_b32 s36, s34, 12")
    A.e("s_mul_i32 s37, s15, 1152"); A.e("s_lshl_b32 s38, s34, 4"); A.e("s_add_u32 s37, s37, s38"); A.e("s_mul_i32 s37, s37, 1152")
    A.e("s_mul_i32 s38, s33, 384"); A.e("s_add_u32 s37, s37, s38")
    A.e("s_lshl_b32 s38, s34, 11"); A.e("s_add_u32 s38, s38, 16384")
    def issue(S):
        sl = (S % 4) * SLOT
        A.e("s_add_u32 m0, s36, 0x%x" % sl)
        A.e("s_nop 0")
        for k in range(4):
            A.vmem("buffer_load_dwordx4 v%d, s[24:27], s35 offen offset:%d lds" % (VL16, k * 1024), ("d", S))
        A.e("s_add_u32 s35, s35, 4096")
        for e in range(2):
            for j in range(3):
                A.e("s_add_u32 m0, s38, 0x%x" % (sl + j * 8192 + e * 1024))
                A.e("s_add_u32 s39, s37, %d" % (e * 8 * 1152 + j * 128))
                A.vmem("buffer_load_dwordx4 v%d, s[16:19], s39 offen lds" % VW, ("d", S))
        A.e("s_add_u32 s37, s37, %d" % (64 * 1152))
    issue(0); issue(1)
    nxt = 2
    for S in range(NST):
        A.wait(vm=("d", S))
        A.e("s_barrier")
        lim = min(NST - 1, S + 3)
        while nxt <= lim:
            issue(nxt); nxt += 1
    A.e("s_endpgm")

    A.label("K2_ATT")
    A.reset()
    A.e("s_and_b32 s15, s13, 1")
    A.e("s_lshr_b32 s32, s13, 1"); A.e("s_lshl_b32 s32, s32, 3"); A.e("s_add_u32 s32, s32, s14"); A.e("s_sub_u32 s32, s32, 24")
    KB = 73728; VB = KB + 72 * 624
    A.e("s_mul_i32 s33, s15, 72"); A.e("s_mul_i32 s34, s12, 9"); A.e("s_add_u32 s33, s33, s34")
    A.e("s_lshl_b32 s33, s33, 14"); A.e("s_lshl_b32 s35, s32, 9"); A.e("s_add_u32 s33, s33, s35"); A.e("s_add_u32 s33, s33, 0x%x" % G.QKV)
    A.e("s_mul_i32 s36, s34, 624")
    Q = 0
    KV = 20
    LG = 60
    O = 80
    P = 120
    VL8 = 156; VKA = 157; VROW = 158
    A.e("v_lshlrev_b32 v%d, 3, v%d" % (VL8, L))
    A.e("s_mov_b32 exec_lo, -1"); A.e("s_mov_b32 exec_hi, 0x7f")
    for which in range(2):
        for c in range(9):
            A.e("s_add_u32 m0, s36, %d" % ((KB if which == 0 else VB) + c * 624))
            A.e("s_add_u32 s37, s33, 0x%x" % ((144 * (which + 1) + c) * 16384 - 112))
            A.vmem("buffer_load_dwordx4 v%d, s[24:27], s37 offen lds" % VL16, "k" if which == 0 else "v")
        if which == 0:
            A.e("s_mov_b64 exec, -1")
            for c in range(9):
                A.e("s_add_u32 s37, s33, 0x%x" % (c * 16384))
                A.vmem("buffer_load_dwordx2 %s, v%d, s[24:27], s37 offen" % (v(Q + 2 * c, 2), VL8), "q")
            A.e("s_mov_b32 exec_hi, 0x7f")
    A.e("s_mov_b64 exec, -1")
    A.e("s_mul_i32 s38, s15, 288"); A.e("s_lshl_b32 s39, s12, 3"); A.e("s_add_u32 s38, s38, s39"); A.e("s_mul_i32 s38, s38, 1152")
    A.e("s_lshr_b32 s39, s12, 2"); A.e("s_mul_i32 s39, s39, 36864"); A.e("s_and_b32 s40, s12, 3"); A.e("s_lshl_b32 s40, s40, 10"); A.e("s_add_u32 s39, s39, s40")
    for j in range(9):
        A.e("s_add_u32 m0, s39, %d" % (j * 4096))
        A.e("s_add_u32 s37, s38, %d" % (j * 128))
        A.vmem("buffer_load_dwordx4 v%d, s[20:23], s37 offen lds" % VW, "wo01")
    A.e("v_add_u32 v%d, s36, v%d" % (VKA, VL8))
    A.e("v_add_u32 v%d, %d, v%d" % (VKA, KB, VKA))
    A.e("s_lshl_b32 s41, s32, 6")
    A.e("v_add_u32 v%d, s41, v%d" % (VROW, L))
    A.e("s_mov_b32 s42, 0x%x" % G.f2u(18 ** -0.5 * 1.4426950408889634))
    A.e("v_mov_b32 v%d, 0x%x" % (T + 2, G.f2u(-1e9)))
    def rd(which, w_):
        b = KV + 18 * (w_ % 2)
        for c in range(9):
            A.lds("ds_read_b64 %s, v%d offset:%d" % (v(b + 2 * c, 2), VKA, (0 if which == 0 else VB - KB) + c * 624 + (14 - 2 * w_) * 8), (which, w_))
    A.wait(vm="q")
    G.stamp_mid(A, opt)
    rd(0, 0)
    for w_ in range(8):
        b = KV + 18 * (w_ % 2)
        A.wait(lg=(0, w_))
        if w_ < 7: rd(0, w_ + 1)
        for d in range(9):
            for hd in range(2):
                r = hd * 9 + d
                lg = LG + hd * 8 + w_
                A.e("v_dot2_f32_bf16 v%d, v%d, v%d, %s" % (lg, Q + r, b + r, "0" if d == 0 else "v%d" % lg))
    A.wait(vm="v")
    rd(1, 0)
    A.e("s_nop 1")
    for w_ in range(1, 8):
        A.e("v_cmp_le_u32 vcc, %d, v%d" % (2 * w_, VROW))
        A.e("s_nop 1")
        for hd in range(2):
            lg = LG + hd * 8 + w_
            A.e("v_cndmask_b32 v%d, v%d, v%d, vcc" % (lg, T + 2, lg))
    for hd in range(2):
        lg = LG + hd * 8; m = T + 3 + hd
        A.e("v_max3_f32 v%d, v%d, v%d, v%d" % (m, lg, lg + 1, lg + 2))
        A.e("v_max3_f32 v%d, v%d, v%d, v%d" % (m, m, lg + 3, lg + 4))
        A.e("v_max3_f32 v%d, v%d, v%d, v%d" % (m, m, lg + 5, lg + 6))
        A.e("v_max_f32 v%d, v%d, v%d" % (m, m, lg + 7))
    for hd in range(2):
        for w_ in range(8):
            lg = LG + hd * 8 + w_
            A.e("v_sub_f32 v%d, v%d, v%d" % (lg, lg, T + 3 + hd))
    for k in range(16): A.e("v_mul_f32 v%d, s42, v%d" % (LG + k, LG + k))
    for k in range(16): A.e("v_exp_f32 v%d, v%d" % (LG + k, LG + k))
    for hd in range(2):
        lg = LG + hd * 8; sm = T + 5 + hd
        A.e("v_add_f32 v%d, v%d, v%d" % (sm, lg, lg + 1))
    for w_ in range(2, 8):
        for hd in range(2):
            A.e("v_add_f32 v%d, v%d, v%d" % (T + 5 + hd, T + 5 + hd, LG + hd * 8 + w_))
    A.e("v_rcp_f32 v%d, v%d" % (T + 5, T + 5)); A.e("v_rcp_f32 v%d, v%d" % (T + 6, T + 6))
    A.e("v_mov_b32 v%d, 0" % (T + 7))
    for k in range(16): A.e("v_mul_f32 v%d, v%d, v%d" % (LG + k, LG + k, T + 5 + k // 8))
    for k in range(16):
        A.e("v_cvt_pk_bf16_f32 v%d, v%d, v%d" % (P + 2 * k, LG + k, T + 7))
        A.e("v_cvt_pk_bf16_f32 v%d, v%d, v%d" % (P + 2 * k + 1, T + 7, LG + k))
    for w_ in range(8):
        b = KV + 18 * (w_ % 2)
        A.wait(lg=(1, w_))
        if w_ < 7: rd(1, w_ + 1)
        for r in range(18):
            hd = r // 9
            for e in range(2):
                o = O + 2 * r + e
                A.e("v_dot2_f32_bf16 v%d, v%d, v%d, %s" % (o, b + r, P + 2 * (hd * 8 + w_) + e, "0" if w_ == 0 else "v%d" % o))
    A.e("s_nop 2")
    for r in range(18): A.e("v_cvt_pk_bf16_f32 v%d, v%d, v%d" % (Q + r, O + 2 * r, O + 2 * r + 1))
    for c in range(9):
        A.lds("ds_write_b64 v%d, %s offset:%d" % (VKA, v(Q + 2 * c, 2), c * 624), "ow")
    A.wait(vm_all=True, lg_all=True)
    A.e("s_barrier")
    A.e("s_cmp_ge_u32 s12, 4")
    A.e("s_cbranch_scc1 K2_ALOAD")
    slots = [0, 36864, VB]
    ACC = 0
    BF = 144
    AF = 152
    D = 4; NB = 5
    VA0 = 176; VA1 = 177; VBo = 178
    A.e("s_and_b32 s34, s12, 1"); A.e("s_lshr_b32 s35, s12, 1")
    A.e("s_cmp_eq_u32 s35, 0")
    A.e("s_cselect_b64 vcc, -1, 0")
    A.e("v_cndmask_b32 v%d, v%d, v%d, vcc" % (VA0, VT1, VT0))
    A.e("v_cndmask_b32 v%d, v%d, v%d, vcc" % (VA1, VT0, VT1))
    A.e("s_cselect_b32 s37, 0, %d" % (4 * 4096)); A.e("v_add_u32 v%d, s37, v%d" % (VA0, VA0))
    A.e("s_cselect_b32 s37, 0, %d" % (5 * 4096)); A.e("v_add_u32 v%d, s37, v%d" % (VA1, VA1))
    A.e("v_and_b32 v%d, 31, v%d" % (VBo, L)); A.e("v_lshlrev_b32 v%d, 3, v%d" % (VBo, VBo))
    A.e("v_bfe_u32 v%d, v%d, 5, 1" % (T + 3, L)); A.e("v_mul_u32_u24 v%d, 624, v%d" % (T + 3, T + 3)); A.e("v_add_u32 v%d, v%d, v%d" % (VBo, T + 3, VBo))
    A.e("s_lshl_b32 s37, s34, 8"); A.e("s_add_u32 s37, s37, %d" % KB); A.e("v_add_u32 v%d, s37, v%d" % (VBo, VBo))
    A.e("s_lshl_b32 s36, s32, 1"); A.e("s_add_u32 s36, s36, s34"); A.e("s_mul_i32 s36, s36, 36"); A.e("s_mul_i32 s37, s35, 18"); A.e("s_add_u32 s36, s36, s37")
    A.e("s_lshl_b32 s36, s36, 10"); A.e("s_mul_i32 s37, s15, %d" % G.PSET); A.e("s_add_u32 s36, s36, s37"); A.e("s_add_u32 s36, s36, 0x%x" % (G.PART + 4 * G.PSET))
    seq = [(ks, t) for ks in range(18) for t in range(9)]
    N = len(seq)
    cur = {"base": 0}
    done_bar = set()
    def ereads(i):
        ks, t = seq[i]
        S, kk = divmod(ks, 2)
        if t == 0:
            if slots[S % 3] != cur["base"]:
                d = slots[S % 3] - cur["base"]
                for r in (VA0, VA1):
                    if d > 0: A.e("v_add_u32 v%d, 0x%x, v%d" % (r, d, r))
                    else: A.e("v_subrev_u32 v%d, 0x%x, v%d" % (r, -d, r))
                cur["base"] = slots[S % 3]
            for rr in range(2):
                A.lds("ds_read_b64 %s, v%d offset:%d" % (v(BF + 4 * (ks % 2) + 2 * rr, 2), VBo, (4 * ks + 2 * rr) * 624), ("a", i))
        for rr in range(2):
            A.lds("ds_read_b64_tr_b16 %s, v%d offset:%d" % (v(AF + 4 * (i % NB) + 2 * rr, 2), VA1 if t % 2 else VA0, (t // 2) * 4096 + (2 * kk + rr) * 1024), ("a", i))
    nread = 0
    for i in range(D): ereads(nread); nread += 1
    for i in range(N):
        ks, t = seq[i]
        A.wait(lg=("a", i))
        a = ACC + 16 * t
        A.e("v_mfma_f32_32x32x16_bf16 %s, %s, %s, %s" % (v(a, 16), v(AF + 4 * (i % NB), 4), v(BF + 4 * (ks % 2), 4), "0" if ks == 0 else v(a, 16)))
        target = min(N, i + D + 1)
        while nread < target:
            if nread % 18 == 0 and nread not in done_bar:
                if nread > i + D - 1: break
                A.wait(lg_all=True); A.e("s_barrier"); done_bar.add(nread)
            ereads(nread); nread += 1
    A.e("s_nop 7"); A.e("s_nop 3")
    for t in range(9):
        a = ACC + 16 * t
        for j in range(8): A.e("v_cvt_pk_bf16_f32 v%d, v%d, v%d" % (a + j, a + 2 * j, a + 2 * j + 1))
        A.e("s_add_u32 s37, s36, %d" % (2 * t * 1024))
        A.vmem("buffer_store_dwordx4 %s, v%d, s[24:27], s37 offen%s" % (v(a, 4), VL16, G.STF[opt.get("k2_st", 0)]))
        A.vmem("buffer_store_dwordx4 %s, v%d, s[24:27], s37 offen offset:1024%s" % (v(a + 4, 4), VL16, G.STF[opt.get("k2_st", 0)]))
    G.stamp_end(A, opt, 2, 180, 12)
    A.e("s_endpgm")
    A.label("K2_ALOAD")
    A.reset()
    def aissue(S):
        for j in range(9):
            A.e("s_add_u32 m0, s40, %d" % (slots[S % 3] + j * 4096))
            A.e("s_add_u32 s37, s38, %d" % ((S - 1) * 32 * 1152 + j * 128))
            A.vmem("buffer_load_dwordx4 v%d, s[20:23], s37 offen lds" % VW, ("d", S))
    aissue(2)
    for S in range(1, 9):
        A.wait(vm=("d", S))
        A.e("s_barrier")
        if S + 2 <= 8: aissue(S + 2)
    A.label("K2_END")
    A.e("s_endpgm")
    return kernel_desc("k2_gemm2_kernel", 256, 102 if opt.get("stamp") else 64)

def gen_k3(A, opt):
    kernel_begin(A, "k3_reduce_kernel")
    A.e("s_cmp_ge_u32 s2, 256")
    A.e("s_cbranch_scc1 K3_END")
    G.stamp_begin(A, opt); G.stamp_mid(A, opt)
    A.e("s_load_dwordx2 s[4:5], s[0:1], 0")
    A.e("s_load_dwordx2 s[8:9], s[0:1], 56")
    A.e("s_load_dwordx2 s[6:7], s[0:1], 72")
    A.e("v_lshrrev_b32 v1, 6, v0")
    A.e("v_and_b32 v2, 63, v0")
    A.e("v_readfirstlane_b32 s12, v1")
    A.e("s_mul_i32 s13, s2, 9"); A.e("s_add_u32 s13, s13, s12"); A.e("s_lshl_b32 s13, s13, 10"); A.e("s_add_u32 s13, s13, 0x%x" % G.PART)
    A.e("v_lshlrev_b32 v3, 4, v2")
    A.e("s_lshr_b32 s14, s2, 2"); A.e("s_mul_i32 s14, s14, %d" % (32 * 1152))
    A.e("s_and_b32 s15, s2, 3"); A.e("s_mul_i32 s15, s15, 9"); A.e("s_add_u32 s15, s15, s12"); A.e("s_lshl_b32 s15, s15, 5"); A.e("s_add_u32 s14, s14, s15")
    A.e("v_and_b32 v4, 31, v2"); A.e("v_mul_u32_u24 v4, 1152, v4")
    A.e("v_lshrrev_b32 v5, 5, v2"); A.e("v_lshl_add_u32 v4, v5, 4, v4")
    A.e("s_waitcnt lgkmcnt(0)")
    srd(A, 16, 4, G.SZ_X); srd(A, 20, 8, G.SZ_X); srd(A, 24, 6, G.WS_SIZE)
    for k in range(6):
        A.vmem("buffer_load_dwordx4 %s, v3, s[24:27], s13 offen" % v(8 + 4 * k, 4), k)
        if k < 5: A.e("s_add_u32 s13, s13, %d" % G.PSET)
    A.vmem("buffer_load_dwordx4 v[32:35], v4, s[16:19], s14 offen", "x")
    for k in range(6):
        A.wait(vm=k)
        for j in range(4):
            r = 8 + 4 * k + j
            if k == 0:
                A.e("v_lshlrev_b32 v%d, 16, v%d" % (40 + 2 * j, r)); A.e("v_and_b32 v%d, 0xffff0000, v%d" % (41 + 2 * j, r))
            else:
                A.e("v_lshlrev_b32 v36, 16, v%d" % r); A.e("v_and_b32 v37, 0xffff0000, v%d" % r)
                A.e("v_add_f32 v%d, v%d, v36" % (40 + 2 * j, 40 + 2 * j)); A.e("v_add_f32 v%d, v%d, v37" % (41 + 2 * j, 41 + 2 * j))
    A.e("s_nop 1")
    for j in range(4): A.e("v_permlane32_swap_b32 v%d, v%d" % (40 + j, 44 + j))
    A.wait(vm="x")
    for j in range(4):
        A.e("v_lshlrev_b32 v36, 16, v%d" % (32 + j)); A.e("v_and_b32 v37, 0xffff0000, v%d" % (32 + j))
        A.e("v_add_f32 v%d, v%d, v36" % (40 + 2 * j, 40 + 2 * j)); A.e("v_add_f32 v%d, v%d, v37" % (41 + 2 * j, 41 + 2 * j))
    for j in range(4): A.e("v_cvt_pk_bf16_f32 v%d, v%d, v%d" % (8 + j, 40 + 2 * j, 41 + 2 * j))
    A.e("buffer_store_dwordx4 v[8:11], v4, s[20:23], s14 offen")
    if opt.get("stamp"): A.e("s_min_u32 s12, s12, 7")
    G.stamp_end(A, opt, 3, 12, 12)
    A.label("K3_END")
    A.e("s_endpgm")
    return kernel_desc("k3_reduce_kernel", 48, 102 if opt.get("stamp") else 32)

def add(A, opt, launches, descs):
    descs.append(gen_k2(A, opt)); launches.append("; @launch kernel=k2_gemm2_kernel grid=(256,1,1) block=(512,1,1) lds=163840")
    descs.append(gen_k3(A, opt)); launches.append("; @launch kernel=k3_reduce_kernel grid=(256,1,1) block=(576,1,1) lds=0")
```

```python
import sys
from asmlib import *

NAME = "parallel_sum__sliding_local_dilated__glu_gated_swiglu__prompt"
XNF  = 0x0000000
HF   = 0x0300000
QKV  = 0x1600000
PART = 0x1E00000
PSET = 64 * 36 * 1024
WS_SIZE = PART + 6 * PSET
SZ_X = 2048 * 576 * 2
SZ_WQKV = 576 * 1728 * 2
SZ_WO = 576 * 576 * 2
SZ_W = 576 * 4608 * 2
STF = ["", " sc1", " nt", " sc0 sc1", " sc1 nt"]
LOG2E = 0x3fb8aa3b
NLOG2E = 0xbfb8aa3b

def f2u(x):
    import struct
    return struct.unpack("<I", struct.pack("<f", x))[0]

STAMP = 0x3000000
def stamp_begin(A, opt):
    if not opt.get("stamp"): return
    A.e("s_memrealtime s[92:93]")
    A.e("s_memtime s[94:95]")
def stamp_mid(A, opt, idx=0):
    if not opt.get("stamp"): return
    A.e("s_memtime s[88:89]")
def stamp_end(A, opt, kid, vt, wave_sgpr=None):
    if not opt.get("stamp"): return
    A.e("s_waitcnt vmcnt(0) lgkmcnt(0)")
    A.e("s_memrealtime s[96:97]")
    A.e("s_memtime s[98:99]")
    A.e("s_load_dwordx2 s[84:85], s[0:1], 72")
    A.e("s_waitcnt lgkmcnt(0)")
    A.e("s_mov_b32 s80, s84"); A.e("s_and_b32 s81, s85, 0xffff"); A.e("s_mov_b32 s82, 0x10000000"); A.e("s_mov_b32 s83, 0x00020000")
    A.e("s_lshl_b32 s86, s2, 8")
    if wave_sgpr is not None:
        A.e("s_lshl_b32 s87, s%d, 5" % wave_sgpr); A.e("s_add_u32 s86, s86, s87")
    A.e("s_add_u32 s86, s86, 0x%x" % (STAMP + kid * 65536))
    A.e("s_sub_u32 s98, s98, s94")
    A.e("s_sub_u32 s88, s88, s94")
    A.e("v_mov_b32 v%d, s92" % vt); A.e("v_mov_b32 v%d, s96" % (vt + 1)); A.e("v_mov_b32 v%d, s98" % (vt + 2)); A.e("v_mov_b32 v%d, s88" % (vt + 3))
    A.e("v_mov_b32 v%d, 0" % (vt + 4))
    A.e("s_mov_b64 exec, 1")
    A.e("buffer_store_dwordx4 v[%d:%d], v%d, s[80:83], s86 offen" % (vt, vt + 3, vt + 4))

def gen_k0(A, opt):
    kernel_begin(A, "k0_ln_kernel")
    A.e("s_cmp_ge_u32 s2, 256")
    A.e("s_cbranch_scc1 K0_END")
    stamp_begin(A, opt); stamp_mid(A, opt)
    A.e("s_load_dwordx2 s[4:5], s[0:1], 0")
    A.e("s_load_dwordx2 s[6:7], s[0:1], 72")
    A.e("v_lshrrev_b32 v1, 5, v0")
    A.e("v_and_b32 v2, 31, v0")
    A.e("s_lshl_b32 s3, s2, 3")
    A.e("v_add_u32 v1, s3, v1")
    A.e("v_mul_u32_u24 v3, 1152, v1")
    A.e("v_lshl_add_u32 v3, v2, 4, v3")
    A.e("v_cmp_gt_u32 vcc, 8, v2")
    A.e("s_mov_b64 s[20:21], vcc")
    A.e("s_waitcnt lgkmcnt(0)")
    srd(A, 8, 4, SZ_X)
    srd(A, 12, 6, WS_SIZE)
    for r in range(16, 20): pass
    for i in range(12, 16): pass
    A.e("v_mov_b32 v16, 0"); A.e("v_mov_b32 v17, 0"); A.e("v_mov_b32 v18, 0"); A.e("v_mov_b32 v19, 0")
    A.e("buffer_load_dwordx4 v[8:11], v3, s[8:11], 0 offen")
    A.e("buffer_load_dwordx4 v[12:15], v3, s[8:11], 0 offen offset:512")
    A.e("s_mov_b64 exec, s[20:21]")
    A.e("buffer_load_dwordx4 v[16:19], v3, s[8:11], 0 offen offset:1024")
    A.e("s_mov_b64 exec, -1")
    if opt.get("k0_pf", 1):
        A.e("s_load_dwordx4 s[24:27], s[0:1], 32")
        A.e("s_and_b32 s36, s2, 7"); A.e("s_lshr_b32 s37, s2, 3")
        if opt.get("k1_map", 0) == 0:
            A.e("s_and_b32 s38, s36, 3"); A.e("s_lshl_b32 s38, s38, 3"); A.e("s_lshr_b32 s39, s37, 2"); A.e("s_add_u32 s38, s38, s39")
            A.e("s_and_b32 s39, s37, 3"); nrow = 144
        else:
            A.e("s_lshl_b32 s38, s36, 2"); A.e("s_lshr_b32 s39, s37, 3"); A.e("s_add_u32 s38, s38, s39")
            A.e("s_and_b32 s39, s37, 7"); nrow = 72
        A.e("s_mul_i32 s38, s38, 9"); A.e("s_add_u32 s38, s38, 3"); A.e("s_and_b32 s38, s38, 0xfffffffc"); A.e("s_lshl_b32 s38, s38, 5")
        A.e("s_mul_i32 s39, s39, %d" % (nrow * 9216)); A.e("s_add_u32 s38, s38, s39")
        A.e("v_mul_u32_u24 v20, 9216, v0")
        A.e("v_cmp_gt_u32 vcc, %d, v0" % nrow)
        A.e("v_mov_b32 v21, 0x7fffffff")
        A.e("s_nop 0")
        A.e("v_cndmask_b32 v20, v21, v20, vcc")
        A.e("s_waitcnt lgkmcnt(0)")
        srd(A, 28, 24, SZ_W); srd(A, 32, 26, SZ_W)
        A.e("buffer_load_dword v22, v20, s[28:31], s38 offen")
        A.e("buffer_load_dword v23, v20, s[32:35], s38 offen")
    A.e("v_lshrrev_b32 v4, 5, v1")
    A.e("v_mul_u32_u24 v4, 36, v4")
    A.e("v_lshrrev_b32 v5, 1, v2")
    A.e("v_add_u32 v4, v4, v5")
    A.e("v_lshlrev_b32 v4, 6, v4")
    A.e("v_and_b32 v5, 1, v2")
    A.e("v_lshl_add_u32 v4, v5, 5, v4")
    A.e("v_and_b32 v5, 31, v1")
    A.e("v_add_u32 v4, v4, v5")
    A.e("v_lshlrev_b32 v4, 4, v4")
    A.e("s_mov_b32 s16, 0x%x" % (XNF))
    A.e("s_mov_b32 s17, 0x%x" % (XNF + 16384))
    A.e("s_mov_b32 s18, 0x%x" % (XNF + 32768))
    A.e("s_mov_b32 s19, 0x%x" % f2u(1.0 / 576.0))
    A.e("s_waitcnt vmcnt(%d)" % (2 if opt.get("k0_pf", 1) else 0))
    for i in range(12):
        A.e("v_lshlrev_b32 v%d, 16, v%d" % (24 + 2 * i, 8 + i))
        A.e("v_and_b32 v%d, 0xffff0000, v%d" % (25 + 2 * i, 8 + i))
    def reduce32(r, t):
        A.e("s_nop 1")
        A.e("v_add_f32_dpp v%d, v%d, v%d quad_perm:[1,0,3,2] row_mask:0xf bank_mask:0xf" % (r, r, r))
        A.e("s_nop 1")
        A.e("v_add_f32_dpp v%d, v%d, v%d quad_perm:[2,3,0,1] row_mask:0xf bank_mask:0xf" % (r, r, r))
        A.e("s_nop 1")
        A.e("v_add_f32_dpp v%d, v%d, v%d row_half_mirror row_mask:0xf bank_mask:0xf" % (r, r, r))
        A.e("s_nop 1")
        A.e("v_add_f32_dpp v%d, v%d, v%d row_mirror row_mask:0xf bank_mask:0xf" % (r, r, r))
        A.e("v_mov_b32 v%d, v%d" % (t, r))
        A.e("s_nop 1")
        A.e("v_permlane16_swap_b32 v%d, v%d" % (r, t))
        A.e("s_nop 1")
        A.e("v_add_f32 v%d, v%d, v%d" % (r, r, t))
    A.e("v_add_f32 v6, v24, v25")
    A.e("v_add_f32 v7, v26, v27")
    for i in range(4, 24, 2):
        A.e("v_add_f32 v6, v6, v%d" % (24 + i))
        A.e("v_add_f32 v7, v7, v%d" % (25 + i))
    A.e("v_add_f32 v6, v6, v7")
    reduce32(6, 7)
    A.e("v_mul_f32 v6, s19, v6")
    A.e("v_mov_b32 v20, 0"); A.e("v_mov_b32 v21, 0")
    for i in range(0, 24, 2):
        if i == 16: A.e("s_mov_b64 exec, s[20:21]")
        A.e("v_sub_f32 v48, v%d, v6" % (24 + i))
        A.e("v_sub_f32 v49, v%d, v6" % (25 + i))
        A.e("v_fmac_f32 v20, v48, v48")
        A.e("v_fmac_f32 v21, v49, v49")
    A.e("s_mov_b64 exec, -1")
    A.e("v_add_f32 v20, v20, v21")
    reduce32(20, 21)
    A.e("v_mul_f32 v20, s19, v20")
    def rbf(r):
        A.e("v_cvt_pk_bf16_f32 v%d, v%d, v%d" % (r, r, r))
        A.e("v_and_b32 v%d, 0xffff0000, v%d" % (r, r))
    rbf(6); rbf(20)
    A.e("v_add_f32 v20, 0x%x, v20" % f2u(1e-5))
    rbf(20)
    A.e("v_sqrt_f32 v20, v20")
    A.e("s_nop 0")
    rbf(20)
    A.e("v_rcp_f32 v20, v20")
    for i in range(12):
        a, b = 24 + 2 * i, 25 + 2 * i
        A.e("v_sub_f32 v%d, v%d, v6" % (a, a))
        A.e("v_sub_f32 v%d, v%d, v6" % (b, b))
        A.e("v_cvt_pk_bf16_f32 v48, v%d, v%d" % (a, b))
        A.e("v_lshlrev_b32 v%d, 16, v48" % a)
        A.e("v_and_b32 v%d, 0xffff0000, v48" % b)
        A.e("v_mul_f32 v%d, v%d, v20" % (a, a))
        A.e("v_mul_f32 v%d, v%d, v20" % (b, b))
        A.e("v_cvt_pk_bf16_f32 v%d, v%d, v%d" % (8 + i, a, b))
    A.e("buffer_store_dwordx4 v[8:11], v4, s[12:15], s16 offen")
    A.e("buffer_store_dwordx4 v[12:15], v4, s[12:15], s17 offen")
    A.e("s_mov_b64 exec, s[20:21]")
    A.e("buffer_store_dwordx4 v[16:19], v4, s[12:15], s18 offen")
    stamp_end(A, opt, 0, 24)
    A.label("K0_END")
    A.e("s_endpgm")
    return kernel_desc("k0_ln_kernel", 56, 102 if opt.get("stamp") else 48)

def gen_k1(A, opt):
    D = opt.get("k1_D", 4)
    NB = D + 1
    kernel_begin(A, "k1_gemm1_kernel")
    XF = 0
    ACC = 144
    AB = 208
    VA = 232
    VQ = 236
    VO = 239
    VL16 = 242
    VQS = 243
    T = 244
    assert NB * 4 <= 24
    A.e("s_cmp_ge_u32 s2, 256")
    A.e("s_cbranch_scc1 K1_END")
    stamp_begin(A, opt)
    A.e("s_load_dwordx2 s[4:5], s[0:1], 8")
    A.e("s_load_dwordx4 s[8:11], s[0:1], 32")
    A.e("s_load_dwordx2 s[6:7], s[0:1], 72")
    A.e("v_lshrrev_b32 v%d, 6, v0" % T)
    A.e("v_and_b32 v%d, 63, v0" % (T + 1))
    A.e("v_readfirstlane_b32 s12, v%d" % T)
    L = T + 1
    A.e("s_and_b32 s13, s2, 7")
    A.e("s_lshr_b32 s14, s2, 3")
    if opt.get("k1_map", 0) == 0:
        A.e("s_lshr_b32 s15, s13, 2"); A.e("s_lshl_b32 s15, s15, 2"); A.e("s_and_b32 s32, s14, 3"); A.e("s_add_u32 s15, s15, s32")
        A.e("s_and_b32 s32, s13, 3"); A.e("s_lshl_b32 s32, s32, 3"); A.e("s_lshr_b32 s33, s14, 2"); A.e("s_add_u32 s32, s32, s33")
    else:
        A.e("s_and_b32 s15, s14, 7")
        A.e("s_lshl_b32 s32, s13, 2"); A.e("s_lshr_b32 s33, s14, 3"); A.e("s_add_u32 s32, s32, s33")
    SMT, SG = 15, 32
    A.e("s_lshl_b32 s33, s%d, 3" % SMT); A.e("s_add_u32 s33, s33, s12")
    A.e("v_lshlrev_b32 v%d, 4, v%d" % (VL16, L))
    A.e("s_mul_i32 s34, s%d, 9" % SG)
    A.e("s_add_u32 s35, s34, 3"); A.e("s_and_b32 s35, s35, 0xfffffffc")
    A.e("s_sub_u32 s36, s35, s34")
    A.e("s_cmp_eq_u32 s36, 1"); A.e("s_cselect_b32 s37, 1, 0")
    for t in range(4):
        A.e("s_add_u32 s%d, s35, %d" % (40 + t, t))
    for t in range(4):
        A.e("s_add_u32 s38, s37, %d" % t)
        A.e("s_cmp_ge_u32 s38, s36"); A.e("s_cselect_b32 s39, 4, 0")
        A.e("s_add_u32 s38, s38, s39"); A.e("s_add_u32 s%d, s38, s34" % (44 + t))
    A.e("s_cmp_eq_u32 s36, 1"); A.e("s_cselect_b32 s38, 0, 8"); A.e("s_add_u32 s48, s38, s34")
    A.e("s_and_b32 s38, s12, 1")
    A.e("s_lshl_b32 s39, s38, 1")
    A.e("v_lshrrev_b32 v%d, 3, v%d" % (T + 2, L))
    A.e("v_bfe_u32 v%d, v%d, 1, 2" % (T + 3, L))
    A.e("v_bfe_u32 v%d, v%d, 4, 1" % (T + 4, L))
    A.e("v_or_b32 v%d, s39, v%d" % (T + 5, T + 4))
    A.e("v_xor_b32 v%d, v%d, v%d" % (T + 5, T + 5, T + 3))
    A.e("s_lshr_b32 s39, s12, 1"); A.e("s_lshl_b32 s39, s39, 3")
    A.e("v_add_u32 v%d, s39, v%d" % (T + 6, T + 2))
    A.e("v_mul_u32_u24 v%d, 9216, v%d" % (T + 6, T + 6))
    A.e("v_and_b32 v%d, 1, v%d" % (T + 7, L))
    A.e("v_lshl_add_u32 v%d, v%d, 4, v%d" % (T + 6, T + 7, T + 6))
    A.e("v_add_u32 v%d, s35, v%d" % (VO, T + 5))
    A.e("v_lshl_add_u32 v%d, v%d, 5, v%d" % (VO, VO, T + 6))
    A.e("v_add_u32 v%d, s37, v%d" % (VO + 1, T + 5))
    A.e("v_cmp_le_u32 vcc, s36, v%d" % (VO + 1))
    A.e("v_add_u32 v%d, s34, v%d" % (VO + 1, VO + 1))
    A.e("v_add_u32 v%d, 4, v%d" % (VO + 2, VO + 1))
    A.e("v_cndmask_b32 v%d, v%d, v%d, vcc" % (VO + 1, VO + 1, VO + 2))
    A.e("v_lshl_add_u32 v%d, v%d, 5, v%d" % (VO + 1, VO + 1, T + 6))
    A.e("s_min_u32 s49, s%d, 26" % SG)
    A.e("v_lshlrev_b32 v%d, 1, v%d" % (T + 4, T + 4))
    A.e("v_xor_b32 v%d, v%d, v%d" % (T + 4, T + 4, T + 3))
    A.e("s_lshl_b32 s39, s12, 3")
    A.e("v_add_u32 v%d, s39, v%d" % (T + 2, T + 2))
    A.e("v_mul_u32_u24 v%d, 3456, v%d" % (T + 2, T + 2))
    A.e("v_lshl_add_u32 v%d, v%d, 5, v%d" % (T + 2, T + 4, T + 2))
    A.e("s_lshl_b32 s39, s49, 7")
    A.e("v_add_u32 v%d, s39, v%d" % (T + 2, T + 2))
    A.e("v_lshrrev_b32 v%d, 1, v%d" % (T + 3, L))
    A.e("v_mul_u32_u24 v%d, 9216, v%d" % (T + 3, T + 3))
    A.e("s_lshl_b32 s39, s48, 5")
    A.e("v_add_u32 v%d, s39, v%d" % (T + 3, T + 3))
    A.e("s_cmp_lt_u32 s12, 4")
    A.e("s_cselect_b64 vcc, -1, 0")
    A.e("v_cndmask_b32 v%d, v%d, v%d, vcc" % (VO + 2, T + 3, T + 2))
    A.e("v_lshl_add_u32 v%d, v%d, 4, v%d" % (VO + 2, T + 7, VO + 2))
    A.e("s_mov_b32 s51, %d" % (32 * 9216))
    A.e("s_cselect_b32 s51, %d, s51" % (32 * 3456))
    A.e("s_lshl_b32 s52, s12, 10")
    A.e("s_cmp_eq_u32 s12, 5"); A.e("s_cselect_b32 s53, %d, s52" % (5 * 1024 + 128))
    A.e("s_cmp_ge_u32 s12, 6"); A.e("s_cselect_b32 s53, %d, s53" % (7 * 1024))
    A.e("s_waitcnt lgkmcnt(0)")
    A.e("s_bitcmp1_b32 s12, 0")
    A.e("s_cselect_b64 s[16:17], s[10:11], s[8:9]")
    A.e("s_and_b32 s17, s17, 0xffff")
    A.e("s_mov_b32 s18, 0x%x" % SZ_W); A.e("s_mov_b32 s19, 0x00020000")
    A.e("s_cmp_lt_u32 s12, 4")
    A.e("s_cselect_b64 s[20:21], s[4:5], s[16:17]")
    A.e("s_cselect_b32 s22, 0x%x, s18" % SZ_WQKV)
    A.e("s_and_b32 s21, s21, 0xffff")
    A.e("s_cmp_ge_u32 s12, 6"); A.e("s_cselect_b32 s22, 0, s22")
    A.e("s_mov_b32 s23, 0x00020000")
    srd(A, 24, 6, WS_SIZE)
    srd(A, 28, 6, WS_SIZE)
    A.e("s_cmp_ge_u32 s%d, 27" % SG); A.e("s_cselect_b32 s30, 0, s30")
    A.e("s_mul_i32 s54, s33, %d" % (36 * 1024))
    if XNF: A.e("s_add_u32 s54, s54, 0x%x" % XNF)
    A.e("s_mov_b32 s50, 0")
    state = {"n": 0}
    def dma_issue(S, j):
        p, st = divmod(S, 6)
        ldsoff = st * 24576 + j * 8192
        base = 53 if p == 2 else 52
        def f():
            if S == 6 or S == 12:
                if j == 0: A.e("s_mov_b32 s50, 0")
            state[("iss", S, j)] = 1
            A.e("s_add_u32 m0, s%d, 0x%x" % (base, ldsoff))
            A.e("s_nop 0")
            A.vmem("buffer_load_dwordx4 v%d, s[%d:%d], s50 offen lds" % (VO + p, 20 if p == 2 else 16, 23 if p == 2 else 19), ("dma", S))
            if p == 2: A.e("s_add_u32 s50, s50, s51")
            else: A.e("s_add_u32 s50, s50, %d" % (32 * 9216))
        return f
    def x_issue(ks):
        def f():
            if ks % 4 == 0 and ks > 0: A.e("s_add_u32 s54, s54, 4096")
            A.vmem("buffer_load_dwordx4 %s, v%d, s[24:27], s54 offen offset:%d" % (v(XF + 4 * ks, 4), VL16, (ks % 4) * 1024), ("x", ks))
        return f
    PRE = opt.get("k1_pre", 2)
    early = []
    for S in range(6):
        fs = [x_issue(ks) for ks in range(6 * S, 6 * S + 6)] + [dma_issue(S, j) for j in range(3)]
        if S < PRE:
            for f in fs: f()
        else: early.extend(fs)
    A.e("v_bfe_u32 v%d, v%d, 4, 1" % (T + 2, L))
    A.e("v_bfe_u32 v%d, v%d, 5, 1" % (T + 3, L))
    A.e("v_bfe_u32 v%d, v%d, 2, 2" % (T + 4, L))
    A.e("v_and_b32 v%d, 3, v%d" % (T + 5, L))
    A.e("v_lshlrev_b32 v%d, 3, v%d" % (T + 5, T + 5))
    A.e("v_lshl_add_u32 v%d, v%d, 7, v%d" % (T + 6, T + 4, T + 5))
    A.e("v_bfe_u32 v%d, v%d, 3, 1" % (T + 7, L))
    A.e("v_lshl_or_b32 v%d, v%d, 1, v%d" % (T, T + 2, T + 7))
    A.e("v_lshl_add_u32 v%d, v%d, 11, v%d" % (VQ, T + 3, T + 6))
    A.e("v_lshl_add_u32 v%d, v%d, 10, v%d" % (VQ, T + 2, VQ))
    for t in range(4):
        A.e("v_xor_b32 v%d, %d, v%d" % (VA + t, t, T))
        A.e("v_lshl_add_u32 v%d, v%d, 5, v%d" % (VA + t, VA + t, VQ))
    A.e("v_lshl_or_b32 v%d, v%d, 1, v%d" % (T, T + 7, T + 2))
    A.e("v_lshl_add_u32 v%d, v%d, 10, v%d" % (T + 6, T + 3, T + 6))
    A.e("v_lshl_add_u32 v%d, v%d, 5, v%d" % (VQ + 1, T, T + 6))
    A.e("v_xor_b32 v%d, 2, v%d" % (T, T))
    A.e("v_lshl_add_u32 v%d, v%d, 5, v%d" % (VQ + 2, T, T + 6))
    A.e("v_mul_u32_u24 v%d, 1152, v%d" % (VQ, T + 2))
    A.e("v_lshl_add_u32 v%d, v%d, 8, v%d" % (VQ, T + 3, VQ))
    A.e("v_lshl_add_u32 v%d, v%d, 5, v%d" % (VQ, T + 4, VQ))
    A.e("v_add_u32 v%d, v%d, v%d" % (VQ, T + 5, VQ))
    A.e("v_add_u32 v%d, 4096, v%d" % (VQ, VQ))
    A.e("v_and_b32 v%d, 31, v%d" % (VQS, L))
    A.e("v_lshlrev_b32 v%d, 3, v%d" % (VQS, VQS))
    A.e("v_lshl_add_u32 v%d, v%d, 14, v%d" % (VQS, T + 3, VQS))
    A.e("s_mul_i32 s55, s33, 288")
    for i in range(9):
        A.e("s_add_u32 s%d, s%d, s55" % (40 + i, 40 + i))
        A.e("s_lshl_b32 s%d, s%d, 10" % (40 + i, 40 + i))
        A.e("s_add_u32 s%d, s%d, 0x%x" % (40 + i, 40 + i, HF))
    A.e("s_lshl_b32 s56, s49, 18"); A.e("s_lshl_b32 s57, s33, 8"); A.e("s_add_u32 s56, s56, s57"); A.e("s_add_u32 s56, s56, 0x%x" % QKV)
    A.e("s_mov_b32 s58, 0x%x" % NLOG2E)

    pf = []
    PF0 = opt.get("k1_pf0", 200)
    if opt.get("k1_pf", 1):
        A.e("s_load_dwordx2 s[60:61], s[0:1], 48")
        A.e("s_load_dwordx2 s[62:63], s[0:1], 16")
        A.e("s_and_b32 s59, s13, 3"); A.e("s_mul_i32 s59, s59, %d" % (1152 * 1152))
        A.e("s_lshl_b32 s72, s14, 3"); A.e("s_add_u32 s72, s72, s12")
        A.e("s_mul_i32 s73, s72, %d" % (41 * 128)); A.e("s_add_u32 s59, s59, s73")
        A.e("s_and_b32 s74, s13, 1"); A.e("s_mul_i32 s74, s74, %d" % (288 * 1152)); A.e("s_mul_i32 s73, s72, %d" % (11 * 128)); A.e("s_add_u32 s74, s74, s73")
        A.e("v_lshlrev_b32 v%d, 7, v%d" % (T + 2, L))
        A.e("s_waitcnt lgkmcnt(0)")
        srd(A, 64, 60, SZ_W); srd(A, 68, 62, SZ_WO)
        def pf1():
            A.e("s_mov_b32 exec_hi, 0x1ff")
            A.vmem("buffer_load_dword v%d, v%d, s[64:67], s59 offen" % (T + 3, T + 2), "pf")
            A.e("s_mov_b32 exec_hi, -1")
        def pf2():
            A.e("s_mov_b64 exec, 0x7ff")
            A.vmem("buffer_load_dword v%d, v%d, s[68:71], s74 offen" % (T + 3, T + 2), "pf")
            A.e("s_mov_b64 exec, -1")
        pf = [pf1, pf2]
    seq = []
    groups = []
    for p in range(3):
        nt = 3 if p == 2 else 4
        if p == 0: gl = [[0], [1], [2], [3], [4, 5]]
        else: gl = [[0, 1], [2], [3], [4, 5]]
        for g in gl:
            groups.append((len(seq), [6 * p + st for st in g]))
            for t in range(nt):
                for st in g:
                    for kk6 in range(6):
                        seq.append((p, t, 6 * st + kk6))
    N = len(seq)
    gstart = {g[0]: gi for gi, g in enumerate(groups)}
    fill = [[] for _ in range(N + 40)]
    last = {}; first = {}
    for i, (p, t, ks) in enumerate(seq):
        last[(p, t)] = i
        first.setdefault((p, t), i)
    def ffn_epi(p, t):
        a = ACC + 16 * t
        ops = []
        sreg = 40 + 4 * p + t if p < 2 else 48
        for j in range(8):
            ops.append("v_mul_f32 v%d, v%d, v%d" % (a + 8 + j, a + j, a + 8 + j))
            ops.append("v_mul_f32 v%d, s58, v%d" % (a + j, a + j))
        for j in range(8): ops.append("v_exp_f32 v%d, v%d" % (a + j, a + j))
        for j in range(8): ops.append("v_add_f32 v%d, 1.0, v%d" % (a + j, a + j))
        for j in range(8): ops.append("v_rcp_f32 v%d, v%d" % (a + j, a + j))
        for j in range(8): ops.append("v_mul_f32 v%d, v%d, v%d" % (a + 8 + j, a + j, a + 8 + j))
        for j in range(4): ops.append("v_cvt_pk_bf16_f32 v%d, v%d, v%d" % (a + j, a + 8 + 2 * j, a + 9 + 2 * j))
        ops.append(("vm", "buffer_store_dwordx4 %s, v%d, s[24:27], s%d offen%s" % (v(a, 4), VL16, sreg, STF[opt.get("k1_st", 0)])))
        return ops
    def qkv_epi(t):
        a = ACC + 16 * t
        ops = []
        for j in range(8): ops.append("v_cvt_pk_bf16_f32 v%d, v%d, v%d" % (a + j, a + 2 * j, a + 2 * j + 1))
        for q in range(4):
            ops.append("s_add_u32 s57, s56, 0x%x" % ((8 * (t - 1) + 2 * q) * 16384))
            ops.append(("vm", "buffer_store_dwordx2 %s, v%d, s[28:31], s57 offen%s" % (v(a + 2 * q, 2), VQS, STF[opt.get("k1_st", 0)])))
        return ops
    cur = 0
    RATE = opt.get("k1_nsl", 16)
    tail_ops = []
    for p in range(3):
        for t in range(3 if p == 2 else 4):
            ops = ffn_epi(p, t) if (p < 2 or t == 0) else qkv_epi(t)
            start = max(cur, last[(p, t)] + 4)
            dead = first.get((p + 1, t), None)
            nsl = RATE if p < 2 else (len(ops) + 4) // 5
            for k, op in enumerate(ops):
                fill[start + k * nsl // len(ops)].append(op)
            pos = start + nsl
            cur = pos
            if dead is not None: assert pos - 1 < dead - 1, (p, t, pos, dead)
    awin = {}
    def areg(p, t):
        return (VQ + t) if p == 2 else (VA + t)
    def emit_reads(i):
        p, t, ks = seq[i]
        st, kk6 = divmod(ks, 6)
        ch, kk = divmod(kk6, 2)
        r = areg(p, t)
        win = (st // 2) * 49152
        curw = awin.get(r, 0)
        if win != curw:
            d = win - curw
            if d > 0: A.e("v_add_u32 v%d, 0x%x, v%d" % (r, d, r))
            else: A.e("v_subrev_u32 v%d, 0x%x, v%d" % (r, -d, r))
            awin[r] = win
        base = (st % 2) * 24576 + ch * 8192
        b = AB + 4 * (i % NB)
        for rr in range(2):
            if p < 2: off = base + kk * 4096 + rr * 512
            elif t == 0: off = base + kk * 512 + rr * 128
            else: off = base + kk * 2048 + rr * 512
            if opt.get("k1_noread") and i >= NB: continue
            if opt.get("k1_halfread") and i >= NB and i % 2: continue
            if opt.get("k1_plainread"):
                A.lds("ds_read_b64 %s, v%d offset:%d" % (v(b + 2 * rr, 2), r, off), ("a", i)); continue
            A.lds("ds_read_b64_tr_b16 %s, v%d offset:%d" % (v(b + 2 * rr, 2), r, off), ("a", i))
    pend_dma = []
    def barrier_for(gi):
        stages = groups[gi][1]
        if not opt.get("k1_nodma"):
            for S in stages: assert ("iss", S, 2) in state, ("dma not issued", S)
        A.wait(vm=[("dma", S) for S in stages], lg_all=(gi > 0))
        if opt.get("gstamp") == 1: A.e("s_memtime s[%d:%d]" % (60 + 2 * gi, 61 + 2 * gi))
        if not opt.get("k1_nobar"): A.e("s_barrier")
        if opt.get("gstamp") == 2: A.e("s_memtime s[%d:%d]" % (60 + 2 * gi, 61 + 2 * gi))
        if gi > 0:
            for S in groups[gi - 1][1]:
                if S + 6 < 18 and not opt.get("k1_nodma"):
                    for j in range(3): pend_dma.append(dma_issue(S + 6, j))
    barrier_for(0)
    stamp_mid(A, opt)
    nread = 0
    for i in range(D):
        emit_reads(nread); nread += 1
    for i in range(N):
        p, t, ks = seq[i]
        A.wait(lg=("a", i), vm=("x", ks) if p == 0 else None)
        a = ACC + 16 * t
        c = "0" if first[(p, t)] == i else v(a, 16)
        if opt.get("k1_fake16"):
            for hh in range(2):
                aa = a + 4 * ((2 * i + hh) % 4)
                A.e("v_mfma_f32_16x16x32_bf16 %s, %s, %s, %s" % (v(aa, 4), v(AB + 4 * (i % NB), 4), v(XF + 4 * ((ks + hh) % 36 if p else max(0, ks - hh)), 4), v(aa, 4)))
        elif not opt.get("k1_nomfma"): A.e("v_mfma_f32_32x32x16_bf16 %s, %s, %s, %s" % (v(a, 16), v(AB + 4 * (i % NB), 4), v(XF + 4 * ks, 4), c))
        target = min(N, i + D + 1)
        while nread < target:
            if nread in gstart:
                if nread > i + D - 1 and ("bar", nread) not in state:
                    break
                if ("bar", nread) not in state:
                    barrier_for(gstart[nread]); state[("bar", nread)] = 1
            emit_reads(nread); nread += 1
        for op in fill[i]:
            if isinstance(op, tuple):
                if not opt.get("k1_nost"): A.vmem(op[1], "st")
            elif not opt.get("k1_noepi"): A.e(op)
        if early:
            if i % opt.get("k1_eint", 2) == 0: early.pop(0)()
        elif pend_dma and i % (2 if len(pend_dma) > 6 else 3) == 0:
            pend_dma.pop(0)()
        elif pf and i >= PF0 and i % 4 == 1:
            pf.pop(0)()
    assert not pend_dma
    A.e("s_nop 7"); A.e("s_nop 3")
    for i in range(N, len(fill)):
        for op in fill[i]:
            if isinstance(op, tuple): A.vmem(op[1], "st")
            else: A.e(op)
    if opt.get("gstamp"):
        A.e("s_memtime s[86:87]")
        A.e("s_waitcnt vmcnt(0) lgkmcnt(0)")
        for gi in range(14):
            A.e("s_sub_u32 s%d, s%d, s94" % (60 + 2 * gi, 60 + 2 * gi))
            A.e("v_mov_b32 v%d, s%d" % (gi, 60 + 2 * gi))
        A.e("v_mov_b32 v14, 0"); A.e("v_mov_b32 v15, 0"); A.e("v_mov_b32 v16, 0")
        A.e("s_lshl_b32 s60, s2, 9"); A.e("s_lshl_b32 s61, s12, 6"); A.e("s_add_u32 s60, s60, s61"); A.e("s_add_u32 s60, s60, 0x%x" % (STAMP + 0x80000))
        A.e("s_mov_b32 s26, 0x10000000")
        A.e("s_mov_b64 exec, 1")
        for q in range(4): A.e("buffer_store_dwordx4 v[%d:%d], v16, s[24:27], s60 offen offset:%d" % (4 * q, 4 * q + 3, 16 * q))
        A.e("s_mov_b64 exec, -1")
    stamp_end(A, opt, 1, 0, 12)
    A.label("K1_END")
    A.e("s_endpgm")
    return kernel_desc("k1_gemm1_kernel", 256, 102 if opt.get("stamp") else 80)

HEADER = """; Kernarg layout for this problem (80 bytes, ptrs only, base s[0:1]):
"""

def build(opt):
    A = Asm()
    launches = []
    descs = []
    descs.append(gen_k0(A, opt)); launches.append("; @launch kernel=k0_ln_kernel grid=(256,1,1) block=(256,1,1) lds=0")
    descs.append(gen_k1(A, opt)); launches.append("; @launch kernel=k1_gemm1_kernel grid=(256,1,1) block=(512,1,1) lds=147456")
    if not opt.get("only1"):
        import gen2
        gen2.add(A, opt, launches, descs)
    return HEADER + "\n".join(launches) + "\n" + '.amdgcn_target "amdgcn-amd-amdhsa--gfx950"\n' + A.text() + "".join(descs)

if __name__ == "__main__":
    opt = {}
    out = "cdna_kernels/%s.s" % NAME
    for a in sys.argv[1:]:
        if a.startswith("out="): out = a[4:]
        else:
            k, val = a.split("="); opt[k] = int(val)
    open(out, "w").write(build(opt))
    print("wrote", out)
```

```python
import sys
from asmlib import *

NAME = "parallel_sum__sliding_local_dilated__glu_gated_swiglu__prompt"
XNF  = 0x0000000
HF   = 0x0300000
QKV  = 0x1600000
PART = 0x1E00000
PSET = 64 * 36 * 1024
WS_SIZE = PART + 6 * PSET
SZ_X = 2048 * 576 * 2
SZ_WQKV = 576 * 1728 * 2
SZ_WO = 576 * 576 * 2
SZ_W = 576 * 4608 * 2
STF = ["", " sc1", " nt", " sc0 sc1", " sc1 nt"]
LOG2E = 0x3fb8aa3b
NLOG2E = 0xbfb8aa3b

def f2u(x):
    import struct
    return struct.unpack("<I", struct.pack("<f", x))[0]

STAMP = 0x3000000
def stamp_begin(A, opt):
    if not opt.get("stamp"): return
    A.e("s_memrealtime s[92:93]")
    A.e("s_memtime s[94:95]")
def stamp_mid(A, opt, idx=0):
    if not opt.get("stamp"): return
    A.e("s_memtime s[88:89]")
def stamp_end(A, opt, kid, vt, wave_sgpr=None):
    if not opt.get("stamp"): return
    A.e("s_waitcnt vmcnt(0) lgkmcnt(0)")
    A.e("s_memrealtime s[96:97]")
    A.e("s_memtime s[98:99]")
    A.e("s_load_dwordx2 s[84:85], s[0:1], 72")
    A.e("s_waitcnt lgkmcnt(0)")
    A.e("s_mov_b32 s80, s84"); A.e("s_and_b32 s81, s85, 0xffff"); A.e("s_mov_b32 s82, 0x10000000"); A.e("s_mov_b32 s83, 0x00020000")
    A.e("s_lshl_b32 s86, s2, 8")
    if wave_sgpr is not None:
        A.e("s_lshl_b32 s87, s%d, 5" % wave_sgpr); A.e("s_add_u32 s86, s86, s87")
    A.e("s_add_u32 s86, s86, 0x%x" % (STAMP + kid * 65536))
    A.e("s_sub_u32 s98, s98, s94")
    A.e("s_sub_u32 s88, s88, s94")
    A.e("v_mov_b32 v%d, s92" % vt); A.e("v_mov_b32 v%d, s96" % (vt + 1)); A.e("v_mov_b32 v%d, s98" % (vt + 2)); A.e("v_mov_b32 v%d, s88" % (vt + 3))
    A.e("v_mov_b32 v%d, 0" % (vt + 4))
    A.e("s_mov_b64 exec, 1")
    A.e("buffer_store_dwordx4 v[%d:%d], v%d, s[80:83], s86 offen" % (vt, vt + 3, vt + 4))

def gen_k0(A, opt):
    kernel_begin(A, "k0_ln_kernel")
    A.e("s_cmp_ge_u32 s2, 256")
    A.e("s_cbranch_scc1 K0_END")
    stamp_begin(A, opt); stamp_mid(A, opt)
    A.e("s_load_dwordx2 s[4:5], s[0:1], 0")
    A.e("s_load_dwordx2 s[6:7], s[0:1], 72")
    if opt.get("k0_cpf"):
        A.e("s_getpc_b64 s[40:41]")
        A.label("K0_PC")
        A.e("s_and_b32 s41, s41, 0xffff")
        A.e("s_mov_b32 s42, CODE_END-K0_PC")
        A.e("s_mov_b32 s43, 0x00020000")
        A.e("v_lshlrev_b32 v50, 7, v0")
        A.e("s_mov_b32 s44, 32768")
        A.e("buffer_load_dword v51, v50, s[40:43], 0 offen")
        A.e("buffer_load_dword v52, v50, s[40:43], s44 offen")
    A.e("v_lshrrev_b32 v1, 5, v0")
    A.e("v_and_b32 v2, 31, v0")
    A.e("s_lshl_b32 s3, s2, 3")
    A.e("v_add_u32 v1, s3, v1")
    A.e("v_mul_u32_u24 v3, 1152, v1")
    A.e("v_lshl_add_u32 v3, v2, 4, v3")
    A.e("v_cmp_gt_u32 vcc, 8, v2")
    A.e("s_mov_b64 s[20:21], vcc")
    A.e("s_waitcnt lgkmcnt(0)")
    srd(A, 8, 4, SZ_X)
    srd(A, 12, 6, WS_SIZE)
    for r in range(16, 20): pass
    for i in range(12, 16): pass
    A.e("v_mov_b32 v16, 0"); A.e("v_mov_b32 v17, 0"); A.e("v_mov_b32 v18, 0"); A.e("v_mov_b32 v19, 0")
    A.e("buffer_load_dwordx4 v[8:11], v3, s[8:11], 0 offen")
    A.e("buffer_load_dwordx4 v[12:15], v3, s[8:11], 0 offen offset:512")
    A.e("s_mov_b64 exec, s[20:21]")
    A.e("buffer_load_dwordx4 v[16:19], v3, s[8:11], 0 offen offset:1024")
    A.e("s_mov_b64 exec, -1")
    if opt.get("k0_pf", 1):
        A.e("s_load_dwordx4 s[24:27], s[0:1], 32")
        A.e("s_and_b32 s36, s2, 7"); A.e("s_lshr_b32 s37, s2, 3")
        if opt.get("k1_map", 0) == 0:
            A.e("s_and_b32 s38, s36, 3"); A.e("s_lshl_b32 s38, s38, 3"); A.e("s_lshr_b32 s39, s37, 2"); A.e("s_add_u32 s38, s38, s39")
            A.e("s_and_b32 s39, s37, 3"); nrow = 144
        else:
            A.e("s_lshl_b32 s38, s36, 2"); A.e("s_lshr_b32 s39, s37, 3"); A.e("s_add_u32 s38, s38, s39")
            A.e("s_and_b32 s39, s37, 7"); nrow = 72
        A.e("s_mul_i32 s38, s38, 9"); A.e("s_add_u32 s38, s38, 3"); A.e("s_and_b32 s38, s38, 0xfffffffc"); A.e("s_lshl_b32 s38, s38, 5")
        A.e("s_mul_i32 s39, s39, %d" % (nrow * 9216)); A.e("s_add_u32 s38, s38, s39")
        A.e("v_mul_u32_u24 v20, 9216, v0")
        A.e("v_cmp_gt_u32 vcc, %d, v0" % nrow)
        A.e("v_mov_b32 v21, 0x7fffffff")
        A.e("s_nop 0")
        A.e("v_cndmask_b32 v20, v21, v20, vcc")
        A.e("s_waitcnt lgkmcnt(0)")
        srd(A, 28, 24, SZ_W); srd(A, 32, 26, SZ_W)
        A.e("buffer_load_dword v22, v20, s[28:31], s38 offen")
        A.e("buffer_load_dword v23, v20, s[32:35], s38 offen")
    A.e("v_lshrrev_b32 v4, 5, v1")
    A.e("v_mul_u32_u24 v4, 36, v4")
    A.e("v_lshrrev_b32 v5, 1, v2")
    A.e("v_add_u32 v4, v4, v5")
    A.e("v_lshlrev_b32 v4, 6, v4")
    A.e("v_and_b32 v5, 1, v2")
    A.e("v_lshl_add_u32 v4, v5, 5, v4")
    A.e("v_and_b32 v5, 31, v1")
    A.e("v_add_u32 v4, v4, v5")
    A.e("v_lshlrev_b32 v4, 4, v4")
    A.e("s_mov_b32 s16, 0x%x" % (XNF))
    A.e("s_mov_b32 s17, 0x%x" % (XNF + 16384))
    A.e("s_mov_b32 s18, 0x%x" % (XNF + 32768))
    A.e("s_mov_b32 s19, 0x%x" % f2u(1.0 / 576.0))
    A.e("s_waitcnt vmcnt(%d)" % (2 if opt.get("k0_pf", 1) else 0))
    for i in range(12):
        A.e("v_lshlrev_b32 v%d, 16, v%d" % (24 + 2 * i, 8 + i))
        A.e("v_and_b32 v%d, 0xffff0000, v%d" % (25 + 2 * i, 8 + i))
    def reduce32(r, t):
        A.e("s_nop 1")
        A.e("v_add_f32_dpp v%d, v%d, v%d quad_perm:[1,0,3,2] row_mask:0xf bank_mask:0xf" % (r, r, r))
        A.e("s_nop 1")
        A.e("v_add_f32_dpp v%d, v%d, v%d quad_perm:[2,3,0,1] row_mask:0xf bank_mask:0xf" % (r, r, r))
        A.e("s_nop 1")
        A.e("v_add_f32_dpp v%d, v%d, v%d row_half_mirror row_mask:0xf bank_mask:0xf" % (r, r, r))
        A.e("s_nop 1")
        A.e("v_add_f32_dpp v%d, v%d, v%d row_mirror row_mask:0xf bank_mask:0xf" % (r, r, r))
        A.e("v_mov_b32 v%d, v%d" % (t, r))
        A.e("s_nop 1")
        A.e("v_permlane16_swap_b32 v%d, v%d" % (r, t))
        A.e("s_nop 1")
        A.e("v_add_f32 v%d, v%d, v%d" % (r, r, t))
    A.e("v_add_f32 v6, v24, v25")
    A.e("v_add_f32 v7, v26, v27")
    for i in range(4, 24, 2):
        A.e("v_add_f32 v6, v6, v%d" % (24 + i))
        A.e("v_add_f32 v7, v7, v%d" % (25 + i))
    A.e("v_add_f32 v6, v6, v7")
    reduce32(6, 7)
    A.e("v_mul_f32 v6, s19, v6")
    A.e("v_mov_b32 v20, 0"); A.e("v_mov_b32 v21, 0")
    for i in range(0, 24, 2):
        if i == 16: A.e("s_mov_b64 exec, s[20:21]")
        A.e("v_sub_f32 v48, v%d, v6" % (24 + i))
        A.e("v_sub_f32 v49, v%d, v6" % (25 + i))
        A.e("v_fmac_f32 v20, v48, v48")
        A.e("v_fmac_f32 v21, v49, v49")
    A.e("s_mov_b64 exec, -1")
    A.e("v_add_f32 v20, v20, v21")
    reduce32(20, 21)
    A.e("v_mul_f32 v20, s19, v20")
    def rbf(r):
        A.e("v_cvt_pk_bf16_f32 v%d, v%d, v%d" % (r, r, r))
        A.e("v_and_b32 v%d, 0xffff0000, v%d" % (r, r))
    rbf(6); rbf(20)
    A.e("v_add_f32 v20, 0x%x, v20" % f2u(1e-5))
    rbf(20)
    A.e("v_sqrt_f32 v20, v20")
    A.e("s_nop 0")
    rbf(20)
    A.e("v_rcp_f32 v20, v20")
    for i in range(12):
        a, b = 24 + 2 * i, 25 + 2 * i
        A.e("v_sub_f32 v%d, v%d, v6" % (a, a))
        A.e("v_sub_f32 v%d, v%d, v6" % (b, b))
        A.e("v_cvt_pk_bf16_f32 v48, v%d, v%d" % (a, b))
        A.e("v_lshlrev_b32 v%d, 16, v48" % a)
        A.e("v_and_b32 v%d, 0xffff0000, v48" % b)
        A.e("v_mul_f32 v%d, v%d, v20" % (a, a))
        A.e("v_mul_f32 v%d, v%d, v20" % (b, b))
        A.e("v_cvt_pk_bf16_f32 v%d, v%d, v%d" % (8 + i, a, b))
    A.e("buffer_store_dwordx4 v[8:11], v4, s[12:15], s16 offen")
    A.e("buffer_store_dwordx4 v[12:15], v4, s[12:15], s17 offen")
    A.e("s_mov_b64 exec, s[20:21]")
    A.e("buffer_store_dwordx4 v[16:19], v4, s[12:15], s18 offen")
    stamp_end(A, opt, 0, 24)
    A.label("K0_END")
    A.e("s_endpgm")
    return kernel_desc("k0_ln_kernel", 56, 102 if opt.get("stamp") else 48)

def gen_k1(A, opt):
    D = opt.get("k1_D", 4)
    NB = D + 1
    kernel_begin(A, "k1_gemm1_kernel")
    XF = 0
    ACC = 144
    AB = 208
    VA = 232
    VQ = 236
    VO = 239
    VL16 = 242
    VQS = 243
    T = 244
    assert NB * 4 <= 24
    A.e("s_cmp_ge_u32 s2, 256")
    A.e("s_cbranch_scc1 K1_END")
    stamp_begin(A, opt)
    A.e("s_load_dwordx2 s[4:5], s[0:1], 8")
    A.e("s_load_dwordx4 s[8:11], s[0:1], 32")
    A.e("s_load_dwordx2 s[6:7], s[0:1], 72")
    A.e("v_lshrrev_b32 v%d, 6, v0" % T)
    A.e("v_and_b32 v%d, 63, v0" % (T + 1))
    A.e("v_readfirstlane_b32 s12, v%d" % T)
    L = T + 1
    A.e("s_and_b32 s13, s2, 7")
    A.e("s_lshr_b32 s14, s2, 3")
    if opt.get("k1_map", 0) == 0:
        A.e("s_lshr_b32 s15, s13, 2"); A.e("s_lshl_b32 s15, s15, 2"); A.e("s_and_b32 s32, s14, 3"); A.e("s_add_u32 s15, s15, s32")
        A.e("s_and_b32 s32, s13, 3"); A.e("s_lshl_b32 s32, s32, 3"); A.e("s_lshr_b32 s33, s14, 2"); A.e("s_add_u32 s32, s32, s33")
    else:
        A.e("s_and_b32 s15, s14, 7")
        A.e("s_lshl_b32 s32, s13, 2"); A.e("s_lshr_b32 s33, s14, 3"); A.e("s_add_u32 s32, s32, s33")
    SMT, SG = 15, 32
    A.e("s_lshl_b32 s33, s%d, 3" % SMT); A.e("s_add_u32 s33, s33, s12")
    A.e("v_lshlrev_b32 v%d, 4, v%d" % (VL16, L))
    A.e("s_mul_i32 s34, s%d, 9" % SG)
    A.e("s_add_u32 s35, s34, 3"); A.e("s_and_b32 s35, s35, 0xfffffffc")
    A.e("s_sub_u32 s36, s35, s34")
    A.e("s_cmp_eq_u32 s36, 1"); A.e("s_cselect_b32 s37, 1, 0")
    for t in range(4):
        A.e("s_add_u32 s%d, s35, %d" % (40 + t, t))
    for t in range(4):
        A.e("s_add_u32 s38, s37, %d" % t)
        A.e("s_cmp_ge_u32 s38, s36"); A.e("s_cselect_b32 s39, 4, 0")
        A.e("s_add_u32 s38, s38, s39"); A.e("s_add_u32 s%d, s38, s34" % (44 + t))
    A.e("s_cmp_eq_u32 s36, 1"); A.e("s_cselect_b32 s38, 0, 8"); A.e("s_add_u32 s48, s38, s34")
    A.e("s_and_b32 s38, s12, 1")
    A.e("s_lshl_b32 s39, s38, 1")
    A.e("v_lshrrev_b32 v%d, 3, v%d" % (T + 2, L))
    A.e("v_bfe_u32 v%d, v%d, 1, 2" % (T + 3, L))
    A.e("v_bfe_u32 v%d, v%d, 4, 1" % (T + 4, L))
    A.e("v_or_b32 v%d, s39, v%d" % (T + 5, T + 4))
    A.e("v_xor_b32 v%d, v%d, v%d" % (T + 5, T + 5, T + 3))
    A.e("s_lshr_b32 s39, s12, 1"); A.e("s_lshl_b32 s39, s39, 3")
    A.e("v_add_u32 v%d, s39, v%d" % (T + 6, T + 2))
    A.e("v_mul_u32_u24 v%d, 9216, v%d" % (T + 6, T + 6))
    A.e("v_and_b32 v%d, 1, v%d" % (T + 7, L))
    A.e("v_lshl_add_u32 v%d, v%d, 4, v%d" % (T + 6, T + 7, T + 6))
    A.e("v_add_u32 v%d, s35, v%d" % (VO, T + 5))
    A.e("v_lshl_add_u32 v%d, v%d, 5, v%d" % (VO, VO, T + 6))
    A.e("v_add_u32 v%d, s37, v%d" % (VO + 1, T + 5))
    A.e("v_cmp_le_u32 vcc, s36, v%d" % (VO + 1))
    A.e("v_add_u32 v%d, s34, v%d" % (VO + 1, VO + 1))
    A.e("v_add_u32 v%d, 4, v%d" % (VO + 2, VO + 1))
    A.e("v_cndmask_b32 v%d, v%d, v%d, vcc" % (VO + 1, VO + 1, VO + 2))
    A.e("v_lshl_add_u32 v%d, v%d, 5, v%d" % (VO + 1, VO + 1, T + 6))
    A.e("s_min_u32 s49, s%d, 26" % SG)
    A.e("v_lshlrev_b32 v%d, 1, v%d" % (T + 4, T + 4))
    A.e("v_xor_b32 v%d, v%d, v%d" % (T + 4, T + 4, T + 3))
    A.e("s_lshl_b32 s39, s12, 3")
    A.e("v_add_u32 v%d, s39, v%d" % (T + 2, T + 2))
    A.e("v_mul_u32_u24 v%d, 3456, v%d" % (T + 2, T + 2))
    A.e("v_lshl_add_u32 v%d, v%d, 5, v%d" % (T + 2, T + 4, T + 2))
    A.e("s_lshl_b32 s39, s49, 7")
    A.e("v_add_u32 v%d, s39, v%d" % (T + 2, T + 2))
    A.e("v_lshrrev_b32 v%d, 1, v%d" % (T + 3, L))
    A.e("v_mul_u32_u24 v%d, 9216, v%d" % (T + 3, T + 3))
    A.e("s_lshl_b32 s39, s48, 5")
    A.e("v_add_u32 v%d, s39, v%d" % (T + 3, T + 3))
    A.e("s_cmp_lt_u32 s12, 4")
    A.e("s_cselect_b64 vcc, -1, 0")
    A.e("v_cndmask_b32 v%d, v%d, v%d, vcc" % (VO + 2, T + 3, T + 2))
    A.e("v_lshl_add_u32 v%d, v%d, 4, v%d" % (VO + 2, T + 7, VO + 2))
    A.e("s_mov_b32 s51, %d" % (32 * 9216))
    A.e("s_cselect_b32 s51, %d, s51" % (32 * 3456))
    A.e("s_lshl_b32 s52, s12, 10")
    A.e("s_cmp_eq_u32 s12, 5"); A.e("s_cselect_b32 s53, %d, s52" % (5 * 1024 + 128))
    A.e("s_cmp_ge_u32 s12, 6"); A.e("s_cselect_b32 s53, %d, s53" % (7 * 1024))
    A.e("s_waitcnt lgkmcnt(0)")
    A.e("s_bitcmp1_b32 s12, 0")
    A.e("s_cselect_b64 s[16:17], s[10:11], s[8:9]")
    A.e("s_and_b32 s17, s17, 0xffff")
    A.e("s_mov_b32 s18, 0x%x" % SZ_W); A.e("s_mov_b32 s19, 0x00020000")
    A.e("s_cmp_lt_u32 s12, 4")
    A.e("s_cselect_b64 s[20:21], s[4:5], s[16:17]")
    A.e("s_cselect_b32 s22, 0x%x, s18" % SZ_WQKV)
    A.e("s_and_b32 s21, s21, 0xffff")
    A.e("s_cmp_ge_u32 s12, 6"); A.e("s_cselect_b32 s22, 0, s22")
    A.e("s_mov_b32 s23, 0x00020000")
    srd(A, 24, 6, WS_SIZE)
    srd(A, 28, 6, WS_SIZE)
    A.e("s_cmp_ge_u32 s%d, 27" % SG); A.e("s_cselect_b32 s30, 0, s30")
    A.e("s_mul_i32 s54, s33, %d" % (36 * 1024))
    if XNF: A.e("s_add_u32 s54, s54, 0x%x" % XNF)
    A.e("s_mov_b32 s50, 0")
    state = {"n": 0}
    def dma_issue(S, j):
        p, st = divmod(S, 6)
        ldsoff = st * 24576 + j * 8192
        base = 53 if p == 2 else 52
        def f():
            if S == 6 or S == 12:
                if j == 0: A.e("s_mov_b32 s50, 0")
            state[("iss", S, j)] = 1
            A.e("s_add_u32 m0, s%d, 0x%x" % (base, ldsoff))
            A.e("s_nop 0")
            A.vmem("buffer_load_dwordx4 v%d, s[%d:%d], s50 offen lds" % (VO + p, 20 if p == 2 else 16, 23 if p == 2 else 19), ("dma", S))
            if p == 2: A.e("s_add_u32 s50, s50, s51")
            else: A.e("s_add_u32 s50, s50, %d" % (32 * 9216))
        return f
    def x_issue(ks):
        def f():
            if ks % 4 == 0 and ks > 0: A.e("s_add_u32 s54, s54, 4096")
            A.vmem("buffer_load_dwordx4 %s, v%d, s[24:27], s54 offen offset:%d" % (v(XF + 4 * ks, 4), VL16, (ks % 4) * 1024), ("x", ks))
        return f
    PRE = opt.get("k1_pre", 2)
    early = []
    for S in range(6):
        fs = [x_issue(ks) for ks in range(6 * S, 6 * S + 6)] + [dma_issue(S, j) for j in range(3)]
        if S < PRE:
            for f in fs: f()
        else: early.extend(fs)
    A.e("v_bfe_u32 v%d, v%d, 4, 1" % (T + 2, L))
    A.e("v_bfe_u32 v%d, v%d, 5, 1" % (T + 3, L))
    A.e("v_bfe_u32 v%d, v%d, 2, 2" % (T + 4, L))
    A.e("v_and_b32 v%d, 3, v%d" % (T + 5, L))
    A.e("v_lshlrev_b32 v%d, 3, v%d" % (T + 5, T + 5))
    A.e("v_lshl_add_u32 v%d, v%d, 7, v%d" % (T + 6, T + 4, T + 5))
    A.e("v_bfe_u32 v%d, v%d, 3, 1" % (T + 7, L))
    A.e("v_lshl_or_b32 v%d, v%d, 1, v%d" % (T, T + 2, T + 7))
    A.e("v_lshl_add_u32 v%d, v%d, 11, v%d" % (VQ, T + 3, T + 6))
    A.e("v_lshl_add_u32 v%d, v%d, 10, v%d" % (VQ, T + 2, VQ))
    for t in range(4):
        A.e("v_xor_b32 v%d, %d, v%d" % (VA + t, t, T))
        A.e("v_lshl_add_u32 v%d, v%d, 5, v%d" % (VA + t, VA + t, VQ))
    A.e("v_lshl_or_b32 v%d, v%d, 1, v%d" % (T, T + 7, T + 2))
    A.e("v_lshl_add_u32 v%d, v%d, 10, v%d" % (T + 6, T + 3, T + 6))
    A.e("v_lshl_add_u32 v%d, v%d, 5, v%d" % (VQ + 1, T, T + 6))
    A.e("v_xor_b32 v%d, 2, v%d" % (T, T))
    A.e("v_lshl_add_u32 v%d, v%d, 5, v%d" % (VQ + 2, T, T + 6))
    A.e("v_mul_u32_u24 v%d, 1152, v%d" % (VQ, T + 2))
    A.e("v_lshl_add_u32 v%d, v%d, 8, v%d" % (VQ, T + 3, VQ))
    A.e("v_lshl_add_u32 v%d, v%d, 5, v%d" % (VQ, T + 4, VQ))
    A.e("v_add_u32 v%d, v%d, v%d" % (VQ, T + 5, VQ))
    A.e("v_add_u32 v%d, 4096, v%d" % (VQ, VQ))
    A.e("v_and_b32 v%d, 31, v%d" % (VQS, L))
    A.e("v_lshlrev_b32 v%d, 3, v%d" % (VQS, VQS))
    A.e("v_lshl_add_u32 v%d, v%d, 14, v%d" % (VQS, T + 3, VQS))
    A.e("s_mul_i32 s55, s33, 288")
    for i in range(9):
        A.e("s_add_u32 s%d, s%d, s55" % (40 + i, 40 + i))
        A.e("s_lshl_b32 s%d, s%d, 10" % (40 + i, 40 + i))
        A.e("s_add_u32 s%d, s%d, 0x%x" % (40 + i, 40 + i, HF))
    A.e("s_lshl_b32 s56, s49, 18"); A.e("s_lshl_b32 s57, s33, 8"); A.e("s_add_u32 s56, s56, s57"); A.e("s_add_u32 s56, s56, 0x%x" % QKV)
    A.e("s_mov_b32 s58, 0x%x" % NLOG2E)

    pf = []
    PF0 = opt.get("k1_pf0", 200)
    if opt.get("k1_pf", 1):
        A.e("s_load_dwordx2 s[60:61], s[0:1], 48")
        A.e("s_load_dwordx2 s[62:63], s[0:1], 16")
        A.e("s_and_b32 s59, s13, 3"); A.e("s_mul_i32 s59, s59, %d" % (1152 * 1152))
        A.e("s_lshl_b32 s72, s14, 3"); A.e("s_add_u32 s72, s72, s12")
        A.e("s_mul_i32 s73, s72, %d" % (41 * 128)); A.e("s_add_u32 s59, s59, s73")
        A.e("s_and_b32 s74, s13, 1"); A.e("s_mul_i32 s74, s74, %d" % (288 * 1152)); A.e("s_mul_i32 s73, s72, %d" % (11 * 128)); A.e("s_add_u32 s74, s74, s73")
        A.e("v_lshlrev_b32 v%d, 7, v%d" % (T + 2, L))
        A.e("s_waitcnt lgkmcnt(0)")
        srd(A, 64, 60, SZ_W); srd(A, 68, 62, SZ_WO)
        def pf1():
            A.e("s_mov_b32 exec_hi, 0x1ff")
            A.vmem("buffer_load_dword v%d, v%d, s[64:67], s59 offen" % (T + 3, T + 2), "pf")
            A.e("s_mov_b32 exec_hi, -1")
        def pf2():
            A.e("s_mov_b64 exec, 0x7ff")
            A.vmem("buffer_load_dword v%d, v%d, s[68:71], s74 offen" % (T + 3, T + 2), "pf")
            A.e("s_mov_b64 exec, -1")
        pf = [pf1, pf2]
    seq = []
    groups = []
    for p in range(3):
        nt = 3 if p == 2 else 4
        if p == 0: gl = [[0], [1], [2], [3], [4, 5]]
        else: gl = [[0, 1], [2], [3], [4, 5]]
        for g in gl:
            groups.append((len(seq), [6 * p + st for st in g]))
            for t in range(nt):
                for st in g:
                    for kk6 in range(6):
                        seq.append((p, t, 6 * st + kk6))
    N = len(seq)
    gstart = {g[0]: gi for gi, g in enumerate(groups)}
    fill = [[] for _ in range(N + 40)]
    last = {}; first = {}
    for i, (p, t, ks) in enumerate(seq):
        last[(p, t)] = i
        first.setdefault((p, t), i)
    def ffn_epi(p, t):
        a = ACC + 16 * t
        ops = []
        sreg = 40 + 4 * p + t if p < 2 else 48
        for j in range(8):
            ops.append("v_mul_f32 v%d, v%d, v%d" % (a + 8 + j, a + j, a + 8 + j))
            ops.append("v_mul_f32 v%d, s58, v%d" % (a + j, a + j))
        for j in range(8): ops.append("v_exp_f32 v%d, v%d" % (a + j, a + j))
        for j in range(8): ops.append("v_add_f32 v%d, 1.0, v%d" % (a + j, a + j))
        for j in range(8): ops.append("v_rcp_f32 v%d, v%d" % (a + j, a + j))
        for j in range(8): ops.append("v_mul_f32 v%d, v%d, v%d" % (a + 8 + j, a + j, a + 8 + j))
        for j in range(4): ops.append("v_cvt_pk_bf16_f32 v%d, v%d, v%d" % (a + j, a + 8 + 2 * j, a + 9 + 2 * j))
        ops.append(("vm", "buffer_store_dwordx4 %s, v%d, s[24:27], s%d offen%s" % (v(a, 4), VL16, sreg, STF[opt.get("k1_st", 0)])))
        return ops
    def qkv_epi(t):
        a = ACC + 16 * t
        ops = []
        for j in range(8): ops.append("v_cvt_pk_bf16_f32 v%d, v%d, v%d" % (a + j, a + 2 * j, a + 2 * j + 1))
        for q in range(4):
            ops.append("s_add_u32 s57, s56, 0x%x" % ((8 * (t - 1) + 2 * q) * 16384))
            ops.append(("vm", "buffer_store_dwordx2 %s, v%d, s[28:31], s57 offen%s" % (v(a + 2 * q, 2), VQS, STF[opt.get("k1_st", 0)])))
        return ops
    cur = 0
    RATE = opt.get("k1_nsl", 16)
    tail_ops = []
    for p in range(3):
        for t in range(3 if p == 2 else 4):
            ops = ffn_epi(p, t) if (p < 2 or t == 0) else qkv_epi(t)
            start = max(cur, last[(p, t)] + 4)
            dead = first.get((p + 1, t), None)
            nsl = RATE if p < 2 else (len(ops) + 4) // 5
            for k, op in enumerate(ops):
                fill[start + k * nsl // len(ops)].append(op)
            pos = start + nsl
            cur = pos
            if dead is not None: assert pos - 1 < dead - 1, (p, t, pos, dead)
    awin = {}
    def areg(p, t):
        return (VQ + t) if p == 2 else (VA + t)
    def emit_reads(i):
        p, t, ks = seq[i]
        st, kk6 = divmod(ks, 6)
        ch, kk = divmod(kk6, 2)
        r = areg(p, t)
        win = (st // 2) * 49152
        curw = awin.get(r, 0)
        if win != curw:
            d = win - curw
            if d > 0: A.e("v_add_u32 v%d, 0x%x, v%d" % (r, d, r))
            else: A.e("v_subrev_u32 v%d, 0x%x, v%d" % (r, -d, r))
            awin[r] = win
        base = (st % 2) * 24576 + ch * 8192
        b = AB + 4 * (i % NB)
        for rr in range(2):
            if p < 2: off = base + kk * 4096 + rr * 512
            elif t == 0: off = base + kk * 512 + rr * 128
            else: off = base + kk * 2048 + rr * 512
            if opt.get("k1_noread") and i >= NB: continue
            if opt.get("k1_halfread") and i >= NB and i % 2: continue
            if opt.get("k1_plainread"):
                A.lds("ds_read_b64 %s, v%d offset:%d" % (v(b + 2 * rr, 2), r, off), ("a", i)); continue
            A.lds("ds_read_b64_tr_b16 %s, v%d offset:%d" % (v(b + 2 * rr, 2), r, off), ("a", i))
    pend_dma = []
    def barrier_for(gi):
        stages = groups[gi][1]
        if not opt.get("k1_nodma"):
            for S in stages: assert ("iss", S, 2) in state, ("dma not issued", S)
        A.wait(vm=[("dma", S) for S in stages], lg_all=(gi > 0))
        if opt.get("gstamp") == 1: A.e("s_memtime s[%d:%d]" % (60 + 2 * gi, 61 + 2 * gi))
        if not opt.get("k1_nobar"): A.e("s_barrier")
        if opt.get("gstamp") == 2: A.e("s_memtime s[%d:%d]" % (60 + 2 * gi, 61 + 2 * gi))
        if gi > 0:
            for S in groups[gi - 1][1]:
                if S + 6 < 18 and not opt.get("k1_nodma"):
                    for j in range(3): pend_dma.append(dma_issue(S + 6, j))
    barrier_for(0)
    stamp_mid(A, opt)
    nread = 0
    for i in range(D):
        emit_reads(nread); nread += 1
    for i in range(N):
        p, t, ks = seq[i]
        A.wait(lg=("a", i), vm=("x", ks) if p == 0 else None)
        a = ACC + 16 * t
        c = "0" if first[(p, t)] == i else v(a, 16)
        if opt.get("k1_fake16"):
            for hh in range(2):
                aa = a + 4 * ((2 * i + hh) % 4)
                A.e("v_mfma_f32_16x16x32_bf16 %s, %s, %s, %s" % (v(aa, 4), v(AB + 4 * (i % NB), 4), v(XF + 4 * ((ks + hh) % 36 if p else max(0, ks - hh)), 4), v(aa, 4)))
        elif not opt.get("k1_nomfma"): A.e("v_mfma_f32_32x32x16_bf16 %s, %s, %s, %s" % (v(a, 16), v(AB + 4 * (i % NB), 4), v(XF + 4 * ks, 4), c))
        target = min(N, i + D + 1)
        while nread < target:
            if nread in gstart:
                if nread > i + D - 1 and ("bar", nread) not in state:
                    break
                if ("bar", nread) not in state:
                    barrier_for(gstart[nread]); state[("bar", nread)] = 1
            emit_reads(nread); nread += 1
        for op in fill[i]:
            if isinstance(op, tuple):
                if not opt.get("k1_nost"): A.vmem(op[1], "st")
            elif not opt.get("k1_noepi"): A.e(op)
        if early:
            if i % opt.get("k1_eint", 2) == 0: early.pop(0)()
        elif pend_dma and i % (2 if len(pend_dma) > 6 else 3) == 0:
            pend_dma.pop(0)()
        elif pf and i >= PF0 and i % 4 == 1:
            pf.pop(0)()
    assert not pend_dma
    A.e("s_nop 7"); A.e("s_nop 3")
    for i in range(N, len(fill)):
        for op in fill[i]:
            if isinstance(op, tuple): A.vmem(op[1], "st")
            else: A.e(op)
    if opt.get("gstamp"):
        A.e("s_memtime s[86:87]")
        A.e("s_waitcnt vmcnt(0) lgkmcnt(0)")
        for gi in range(14):
            A.e("s_sub_u32 s%d, s%d, s94" % (60 + 2 * gi, 60 + 2 * gi))
            A.e("v_mov_b32 v%d, s%d" % (gi, 60 + 2 * gi))
        A.e("v_mov_b32 v14, 0"); A.e("v_mov_b32 v15, 0"); A.e("v_mov_b32 v16, 0")
        A.e("s_lshl_b32 s60, s2, 9"); A.e("s_lshl_b32 s61, s12, 6"); A.e("s_add_u32 s60, s60, s61"); A.e("s_add_u32 s60, s60, 0x%x" % (STAMP + 0x80000))
        A.e("s_mov_b32 s26, 0x10000000")
        A.e("s_mov_b64 exec, 1")
        for q in range(4): A.e("buffer_store_dwordx4 v[%d:%d], v16, s[24:27], s60 offen offset:%d" % (4 * q, 4 * q + 3, 16 * q))
        A.e("s_mov_b64 exec, -1")
    stamp_end(A, opt, 1, 0, 12)
    A.label("K1_END")
    A.e("s_endpgm")
    return kernel_desc("k1_gemm1_kernel", 256, 102 if opt.get("stamp") else 80)

HEADER = """; Kernarg layout for this problem (80 bytes, ptrs only, base s[0:1]):
"""

def build(opt):
    A = Asm()
    launches = []
    descs = []
    descs.append(gen_k0(A, opt)); launches.append("; @launch kernel=k0_ln_kernel grid=(256,1,1) block=(256,1,1) lds=0")
    descs.append(gen_k1(A, opt)); launches.append("; @launch kernel=k1_gemm1_kernel grid=(256,1,1) block=(512,1,1) lds=147456")
    if not opt.get("only1"):
        import gen2
        gen2.add(A, opt, launches, descs)
    A.label("CODE_END")
    for i in range(opt.get("extra", 0)):
        if i == 0:
            kernel_begin(A, "kx_empty_kernel"); A.e("s_endpgm"); descs.append(kernel_desc("kx_empty_kernel", 8, 16))
        launches.append("; @launch kernel=kx_empty_kernel grid=(256,1,1) block=(256,1,1) lds=0")
    return HEADER + "\n".join(launches) + "\n" + '.amdgcn_target "amdgcn-amd-amdhsa--gfx950"\n' + A.text() + "".join(descs)

if __name__ == "__main__":
    opt = {}
    out = "cdna_kernels/%s.s" % NAME
    for a in sys.argv[1:]:
        if a.startswith("out="): out = a[4:]
        else:
            k, val = a.split("="); opt[k] = int(val)
    open(out, "w").write(build(opt))
    print("wrote", out)
```

```python
import sys
from asmlib import *

NAME = "parallel_sum__sliding_local_dilated__glu_gated_swiglu__prompt"
XNF  = 0x0000000
HF   = 0x0300000
QKV  = 0x1600000
PART = 0x1E00000
PSET = 64 * 36 * 1024
WS_SIZE = PART + 6 * PSET
SZ_X = 2048 * 576 * 2
SZ_WQKV = 576 * 1728 * 2
SZ_WO = 576 * 576 * 2
SZ_W = 576 * 4608 * 2
STF = ["", " sc1", " nt", " sc0 sc1", " sc1 nt"]
LOG2E = 0x3fb8aa3b
NLOG2E = 0xbfb8aa3b

def f2u(x):
    import struct
    return struct.unpack("<I", struct.pack("<f", x))[0]

STAMP = 0x3000000
def stamp_begin(A, opt):
    if not opt.get("stamp"): return
    A.e("s_memrealtime s[92:93]")
    A.e("s_memtime s[94:95]")
def stamp_mid(A, opt, idx=0):
    if not opt.get("stamp"): return
    A.e("s_memtime s[88:89]")
def stamp_end(A, opt, kid, vt, wave_sgpr=None):
    if not opt.get("stamp"): return
    A.e("s_waitcnt vmcnt(0) lgkmcnt(0)")
    A.e("s_memrealtime s[96:97]")
    A.e("s_memtime s[98:99]")
    A.e("s_load_dwordx2 s[84:85], s[0:1], 72")
    A.e("s_waitcnt lgkmcnt(0)")
    A.e("s_mov_b32 s80, s84"); A.e("s_and_b32 s81, s85, 0xffff"); A.e("s_mov_b32 s82, 0x10000000"); A.e("s_mov_b32 s83, 0x00020000")
    A.e("s_lshl_b32 s86, s2, 8")
    if wave_sgpr is not None:
        A.e("s_lshl_b32 s87, s%d, 5" % wave_sgpr); A.e("s_add_u32 s86, s86, s87")
    A.e("s_add_u32 s86, s86, 0x%x" % (STAMP + kid * 65536))
    A.e("s_sub_u32 s98, s98, s94")
    A.e("s_sub_u32 s88, s88, s94")
    A.e("v_mov_b32 v%d, s92" % vt); A.e("v_mov_b32 v%d, s96" % (vt + 1)); A.e("v_mov_b32 v%d, s98" % (vt + 2)); A.e("v_mov_b32 v%d, s88" % (vt + 3))
    A.e("v_mov_b32 v%d, 0" % (vt + 4))
    A.e("s_mov_b64 exec, 1")
    A.e("buffer_store_dwordx4 v[%d:%d], v%d, s[80:83], s86 offen" % (vt, vt + 3, vt + 4))

def gen_k0(A, opt):
    kernel_begin(A, "k0_ln_kernel")
    A.e("s_cmp_ge_u32 s2, 256")
    A.e("s_cbranch_scc1 K0_END")
    stamp_begin(A, opt); stamp_mid(A, opt)
    A.e("s_load_dwordx2 s[4:5], s[0:1], 0")
    A.e("s_load_dwordx2 s[6:7], s[0:1], 72")
    if opt.get("k0_cpf"):
        A.e("s_getpc_b64 s[40:41]")
        A.label("K0_PC")
        A.e("s_and_b32 s41, s41, 0xffff")
        A.e("s_mov_b32 s42, CODE_END-K0_PC")
        A.e("s_mov_b32 s43, 0x00020000")
        A.e("v_lshlrev_b32 v50, 7, v0")
        A.e("s_mov_b32 s44, 32768")
        A.e("buffer_load_dword v51, v50, s[40:43], 0 offen")
        A.e("buffer_load_dword v52, v50, s[40:43], s44 offen")
    A.e("v_lshrrev_b32 v1, 5, v0")
    A.e("v_and_b32 v2, 31, v0")
    A.e("s_lshl_b32 s3, s2, 3")
    A.e("v_add_u32 v1, s3, v1")
    A.e("v_mul_u32_u24 v3, 1152, v1")
    A.e("v_lshl_add_u32 v3, v2, 4, v3")
    A.e("v_cmp_gt_u32 vcc, 8, v2")
    A.e("s_mov_b64 s[20:21], vcc")
    A.e("s_waitcnt lgkmcnt(0)")
    srd(A, 8, 4, SZ_X)
    srd(A, 12, 6, WS_SIZE)
    for r in range(16, 20): pass
    for i in range(12, 16): pass
    A.e("v_mov_b32 v16, 0"); A.e("v_mov_b32 v17, 0"); A.e("v_mov_b32 v18, 0"); A.e("v_mov_b32 v19, 0")
    A.e("buffer_load_dwordx4 v[8:11], v3, s[8:11], 0 offen")
    A.e("buffer_load_dwordx4 v[12:15], v3, s[8:11], 0 offen offset:512")
    A.e("s_mov_b64 exec, s[20:21]")
    A.e("buffer_load_dwordx4 v[16:19], v3, s[8:11], 0 offen offset:1024")
    A.e("s_mov_b64 exec, -1")
    if opt.get("k0_pf", 1):
        A.e("s_load_dwordx4 s[24:27], s[0:1], 32")
        A.e("s_and_b32 s36, s2, 7"); A.e("s_lshr_b32 s37, s2, 3")
        if opt.get("k1_map", 0) == 0:
            A.e("s_and_b32 s38, s36, 3"); A.e("s_lshl_b32 s38, s38, 3"); A.e("s_lshr_b32 s39, s37, 2"); A.e("s_add_u32 s38, s38, s39")
            A.e("s_and_b32 s39, s37, 3"); nrow = 144
        else:
            A.e("s_lshl_b32 s38, s36, 2"); A.e("s_lshr_b32 s39, s37, 3"); A.e("s_add_u32 s38, s38, s39")
            A.e("s_and_b32 s39, s37, 7"); nrow = 72
        A.e("s_mul_i32 s38, s38, 9"); A.e("s_add_u32 s38, s38, 3"); A.e("s_and_b32 s38, s38, 0xfffffffc"); A.e("s_lshl_b32 s38, s38, 5")
        A.e("s_mul_i32 s39, s39, %d" % (nrow * 9216)); A.e("s_add_u32 s38, s38, s39")
        A.e("v_mul_u32_u24 v20, 9216, v0")
        A.e("v_cmp_gt_u32 vcc, %d, v0" % nrow)
        A.e("v_mov_b32 v21, 0x7fffffff")
        A.e("s_nop 0")
        A.e("v_cndmask_b32 v20, v21, v20, vcc")
        A.e("s_waitcnt lgkmcnt(0)")
        srd(A, 28, 24, SZ_W); srd(A, 32, 26, SZ_W)
        A.e("buffer_load_dword v22, v20, s[28:31], s38 offen")
        A.e("buffer_load_dword v23, v20, s[32:35], s38 offen")
    A.e("v_lshrrev_b32 v4, 5, v1")
    A.e("v_mul_u32_u24 v4, 36, v4")
    A.e("v_lshrrev_b32 v5, 1, v2")
    A.e("v_add_u32 v4, v4, v5")
    A.e("v_lshlrev_b32 v4, 6, v4")
    A.e("v_and_b32 v5, 1, v2")
    A.e("v_lshl_add_u32 v4, v5, 5, v4")
    A.e("v_and_b32 v5, 31, v1")
    A.e("v_add_u32 v4, v4, v5")
    A.e("v_lshlrev_b32 v4, 4, v4")
    A.e("s_mov_b32 s16, 0x%x" % (XNF))
    A.e("s_mov_b32 s17, 0x%x" % (XNF + 16384))
    A.e("s_mov_b32 s18, 0x%x" % (XNF + 32768))
    A.e("s_mov_b32 s19, 0x%x" % f2u(1.0 / 576.0))
    A.e("s_waitcnt vmcnt(%d)" % (2 if opt.get("k0_pf", 1) else 0))
    for i in range(12):
        A.e("v_lshlrev_b32 v%d, 16, v%d" % (24 + 2 * i, 8 + i))
        A.e("v_and_b32 v%d, 0xffff0000, v%d" % (25 + 2 * i, 8 + i))
    def reduce32(r, t):
        A.e("s_nop 1")
        A.e("v_add_f32_dpp v%d, v%d, v%d quad_perm:[1,0,3,2] row_mask:0xf bank_mask:0xf" % (r, r, r))
        A.e("s_nop 1")
        A.e("v_add_f32_dpp v%d, v%d, v%d quad_perm:[2,3,0,1] row_mask:0xf bank_mask:0xf" % (r, r, r))
        A.e("s_nop 1")
        A.e("v_add_f32_dpp v%d, v%d, v%d row_half_mirror row_mask:0xf bank_mask:0xf" % (r, r, r))
        A.e("s_nop 1")
        A.e("v_add_f32_dpp v%d, v%d, v%d row_mirror row_mask:0xf bank_mask:0xf" % (r, r, r))
        A.e("v_mov_b32 v%d, v%d" % (t, r))
        A.e("s_nop 1")
        A.e("v_permlane16_swap_b32 v%d, v%d" % (r, t))
        A.e("s_nop 1")
        A.e("v_add_f32 v%d, v%d, v%d" % (r, r, t))
    A.e("v_add_f32 v6, v24, v25")
    A.e("v_add_f32 v7, v26, v27")
    for i in range(4, 24, 2):
        A.e("v_add_f32 v6, v6, v%d" % (24 + i))
        A.e("v_add_f32 v7, v7, v%d" % (25 + i))
    A.e("v_add_f32 v6, v6, v7")
    reduce32(6, 7)
    A.e("v_mul_f32 v6, s19, v6")
    A.e("v_mov_b32 v20, 0"); A.e("v_mov_b32 v21, 0")
    for i in range(0, 24, 2):
        if i == 16: A.e("s_mov_b64 exec, s[20:21]")
        A.e("v_sub_f32 v48, v%d, v6" % (24 + i))
        A.e("v_sub_f32 v49, v%d, v6" % (25 + i))
        A.e("v_fmac_f32 v20, v48, v48")
        A.e("v_fmac_f32 v21, v49, v49")
    A.e("s_mov_b64 exec, -1")
    A.e("v_add_f32 v20, v20, v21")
    reduce32(20, 21)
    A.e("v_mul_f32 v20, s19, v20")
    def rbf(r):
        A.e("v_cvt_pk_bf16_f32 v%d, v%d, v%d" % (r, r, r))
        A.e("v_and_b32 v%d, 0xffff0000, v%d" % (r, r))
    rbf(6); rbf(20)
    A.e("v_add_f32 v20, 0x%x, v20" % f2u(1e-5))
    rbf(20)
    A.e("v_sqrt_f32 v20, v20")
    A.e("s_nop 0")
    rbf(20)
    A.e("v_rcp_f32 v20, v20")
    for i in range(12):
        a, b = 24 + 2 * i, 25 + 2 * i
        A.e("v_sub_f32 v%d, v%d, v6" % (a, a))
        A.e("v_sub_f32 v%d, v%d, v6" % (b, b))
        A.e("v_cvt_pk_bf16_f32 v48, v%d, v%d" % (a, b))
        A.e("v_lshlrev_b32 v%d, 16, v48" % a)
        A.e("v_and_b32 v%d, 0xffff0000, v48" % b)
        A.e("v_mul_f32 v%d, v%d, v20" % (a, a))
        A.e("v_mul_f32 v%d, v%d, v20" % (b, b))
        A.e("v_cvt_pk_bf16_f32 v%d, v%d, v%d" % (8 + i, a, b))
    A.e("buffer_store_dwordx4 v[8:11], v4, s[12:15], s16 offen")
    A.e("buffer_store_dwordx4 v[12:15], v4, s[12:15], s17 offen")
    A.e("s_mov_b64 exec, s[20:21]")
    A.e("buffer_store_dwordx4 v[16:19], v4, s[12:15], s18 offen")
    stamp_end(A, opt, 0, 24)
    A.label("K0_END")
    A.e("s_endpgm")
    return kernel_desc("k0_ln_kernel", 56, 102 if opt.get("stamp") else 48)

def gen_k1(A, opt):
    D = opt.get("k1_D", 4)
    NB = D + 1
    kernel_begin(A, "k1_gemm1_kernel")
    XF = 0
    ACC = 144
    AB = 208
    VA = 232
    VQ = 236
    VO = 239
    VL16 = 242
    VQS = 243
    T = 244
    assert NB * 4 <= 24
    A.e("s_cmp_ge_u32 s2, 256")
    A.e("s_cbranch_scc1 K1_END")
    stamp_begin(A, opt)
    A.e("s_load_dwordx2 s[4:5], s[0:1], 8")
    A.e("s_load_dwordx4 s[8:11], s[0:1], 32")
    A.e("s_load_dwordx2 s[6:7], s[0:1], 72")
    A.e("v_lshrrev_b32 v%d, 6, v0" % T)
    A.e("v_and_b32 v%d, 63, v0" % (T + 1))
    A.e("v_readfirstlane_b32 s12, v%d" % T)
    L = T + 1
    A.e("s_and_b32 s13, s2, 7")
    A.e("s_lshr_b32 s14, s2, 3")
    if opt.get("k1_map", 0) == 0:
        A.e("s_lshr_b32 s15, s13, 2"); A.e("s_lshl_b32 s15, s15, 2"); A.e("s_and_b32 s32, s14, 3"); A.e("s_add_u32 s15, s15, s32")
        A.e("s_and_b32 s32, s13, 3"); A.e("s_lshl_b32 s32, s32, 3"); A.e("s_lshr_b32 s33, s14, 2"); A.e("s_add_u32 s32, s32, s33")
    else:
        A.e("s_and_b32 s15, s14, 7")
        A.e("s_lshl_b32 s32, s13, 2"); A.e("s_lshr_b32 s33, s14, 3"); A.e("s_add_u32 s32, s32, s33")
    SMT, SG = 15, 32
    A.e("s_lshl_b32 s33, s%d, 3" % SMT); A.e("s_add_u32 s33, s33, s12")
    A.e("v_lshlrev_b32 v%d, 4, v%d" % (VL16, L))
    A.e("s_mul_i32 s34, s%d, 9" % SG)
    A.e("s_add_u32 s35, s34, 3"); A.e("s_and_b32 s35, s35, 0xfffffffc")
    A.e("s_sub_u32 s36, s35, s34")
    A.e("s_cmp_eq_u32 s36, 1"); A.e("s_cselect_b32 s37, 1, 0")
    for t in range(4):
        A.e("s_add_u32 s%d, s35, %d" % (40 + t, t))
    for t in range(4):
        A.e("s_add_u32 s38, s37, %d" % t)
        A.e("s_cmp_ge_u32 s38, s36"); A.e("s_cselect_b32 s39, 4, 0")
        A.e("s_add_u32 s38, s38, s39"); A.e("s_add_u32 s%d, s38, s34" % (44 + t))
    A.e("s_cmp_eq_u32 s36, 1"); A.e("s_cselect_b32 s38, 0, 8"); A.e("s_add_u32 s48, s38, s34")
    A.e("s_and_b32 s38, s12, 1")
    A.e("s_lshl_b32 s39, s38, 1")
    A.e("v_lshrrev_b32 v%d, 3, v%d" % (T + 2, L))
    A.e("v_bfe_u32 v%d, v%d, 1, 2" % (T + 3, L))
    A.e("v_bfe_u32 v%d, v%d, 4, 1" % (T + 4, L))
    A.e("v_or_b32 v%d, s39, v%d" % (T + 5, T + 4))
    A.e("v_xor_b32 v%d, v%d, v%d" % (T + 5, T + 5, T + 3))
    A.e("s_lshr_b32 s39, s12, 1"); A.e("s_lshl_b32 s39, s39, 3")
    A.e("v_add_u32 v%d, s39, v%d" % (T + 6, T + 2))
    A.e("v_mul_u32_u24 v%d, 9216, v%d" % (T + 6, T + 6))
    A.e("v_and_b32 v%d, 1, v%d" % (T + 7, L))
    A.e("v_lshl_add_u32 v%d, v%d, 4, v%d" % (T + 6, T + 7, T + 6))
    A.e("v_add_u32 v%d, s35, v%d" % (VO, T + 5))
    A.e("v_lshl_add_u32 v%d, v%d, 5, v%d" % (VO, VO, T + 6))
    A.e("v_add_u32 v%d, s37, v%d" % (VO + 1, T + 5))
    A.e("v_cmp_le_u32 vcc, s36, v%d" % (VO + 1))
    A.e("v_add_u32 v%d, s34, v%d" % (VO + 1, VO + 1))
    A.e("v_add_u32 v%d, 4, v%d" % (VO + 2, VO + 1))
    A.e("v_cndmask_b32 v%d, v%d, v%d, vcc" % (VO + 1, VO + 1, VO + 2))
    A.e("v_lshl_add_u32 v%d, v%d, 5, v%d" % (VO + 1, VO + 1, T + 6))
    A.e("s_min_u32 s49, s%d, 26" % SG)
    A.e("v_lshlrev_b32 v%d, 1, v%d" % (T + 4, T + 4))
    A.e("v_xor_b32 v%d, v%d, v%d" % (T + 4, T + 4, T + 3))
    A.e("s_lshl_b32 s39, s12, 3")
    A.e("v_add_u32 v%d, s39, v%d" % (T + 2, T + 2))
    A.e("v_mul_u32_u24 v%d, 3456, v%d" % (T + 2, T + 2))
    A.e("v_lshl_add_u32 v%d, v%d, 5, v%d" % (T + 2, T + 4, T + 2))
    A.e("s_lshl_b32 s39, s49, 7")
    A.e("v_add_u32 v%d, s39, v%d" % (T + 2, T + 2))
    A.e("v_lshrrev_b32 v%d, 1, v%d" % (T + 3, L))
    A.e("v_mul_u32_u24 v%d, 9216, v%d" % (T + 3, T + 3))
    A.e("s_lshl_b32 s39, s48, 5")
    A.e("v_add_u32 v%d, s39, v%d" % (T + 3, T + 3))
    A.e("s_cmp_lt_u32 s12, 4")
    A.e("s_cselect_b64 vcc, -1, 0")
    A.e("v_cndmask_b32 v%d, v%d, v%d, vcc" % (VO + 2, T + 3, T + 2))
    A.e("v_lshl_add_u32 v%d, v%d, 4, v%d" % (VO + 2, T + 7, VO + 2))
    A.e("s_mov_b32 s51, %d" % (32 * 9216))
    A.e("s_cselect_b32 s51, %d, s51" % (32 * 3456))
    A.e("s_lshl_b32 s52, s12, 10")
    A.e("s_cmp_eq_u32 s12, 5"); A.e("s_cselect_b32 s53, %d, s52" % (5 * 1024 + 128))
    A.e("s_cmp_ge_u32 s12, 6"); A.e("s_cselect_b32 s53, %d, s53" % (7 * 1024))
    A.e("s_waitcnt lgkmcnt(0)")
    A.e("s_bitcmp1_b32 s12, 0")
    A.e("s_cselect_b64 s[16:17], s[10:11], s[8:9]")
    A.e("s_and_b32 s17, s17, 0xffff")
    A.e("s_mov_b32 s18, 0x%x" % SZ_W); A.e("s_mov_b32 s19, 0x00020000")
    A.e("s_cmp_lt_u32 s12, 4")
    A.e("s_cselect_b64 s[20:21], s[4:5], s[16:17]")
    A.e("s_cselect_b32 s22, 0x%x, s18" % SZ_WQKV)
    A.e("s_and_b32 s21, s21, 0xffff")
    A.e("s_cmp_ge_u32 s12, 6"); A.e("s_cselect_b32 s22, 0, s22")
    A.e("s_mov_b32 s23, 0x00020000")
    srd(A, 24, 6, WS_SIZE)
    srd(A, 28, 6, WS_SIZE)
    A.e("s_cmp_ge_u32 s%d, 27" % SG); A.e("s_cselect_b32 s30, 0, s30")
    A.e("s_mul_i32 s54, s33, %d" % (36 * 1024))
    if XNF: A.e("s_add_u32 s54, s54, 0x%x" % XNF)
    A.e("s_mov_b32 s50, 0")
    state = {"n": 0}
    def dma_issue(S, j):
        p, st = divmod(S, 6)
        ldsoff = st * 24576 + j * 8192
        base = 53 if p == 2 else 52
        def f():
            if S == 6 or S == 12:
                if j == 0: A.e("s_mov_b32 s50, 0")
            state[("iss", S, j)] = 1
            A.e("s_add_u32 m0, s%d, 0x%x" % (base, ldsoff))
            A.e("s_nop 0")
            A.vmem("buffer_load_dwordx4 v%d, s[%d:%d], s50 offen lds" % (VO + p, 20 if p == 2 else 16, 23 if p == 2 else 19), ("dma", S))
            if p == 2: A.e("s_add_u32 s50, s50, s51")
            else: A.e("s_add_u32 s50, s50, %d" % (32 * 9216))
        return f
    def x_issue(ks):
        def f():
            if ks % 4 == 0 and ks > 0: A.e("s_add_u32 s54, s54, 4096")
            A.vmem("buffer_load_dwordx4 %s, v%d, s[24:27], s54 offen offset:%d" % (v(XF + 4 * ks, 4), VL16, (ks % 4) * 1024), ("x", ks))
        return f
    PRE = opt.get("k1_pre", 2)
    early = []
    for S in range(6):
        fs = [x_issue(ks) for ks in range(6 * S, 6 * S + 6)] + [dma_issue(S, j) for j in range(3)]
        if S < PRE:
            for f in fs: f()
        else: early.extend(fs)
    A.e("v_bfe_u32 v%d, v%d, 4, 1" % (T + 2, L))
    A.e("v_bfe_u32 v%d, v%d, 5, 1" % (T + 3, L))
    A.e("v_bfe_u32 v%d, v%d, 2, 2" % (T + 4, L))
    A.e("v_and_b32 v%d, 3, v%d" % (T + 5, L))
    A.e("v_lshlrev_b32 v%d, 3, v%d" % (T + 5, T + 5))
    A.e("v_lshl_add_u32 v%d, v%d, 7, v%d" % (T + 6, T + 4, T + 5))
    A.e("v_bfe_u32 v%d, v%d, 3, 1" % (T + 7, L))
    A.e("v_lshl_or_b32 v%d, v%d, 1, v%d" % (T, T + 2, T + 7))
    A.e("v_lshl_add_u32 v%d, v%d, 11, v%d" % (VQ, T + 3, T + 6))
    A.e("v_lshl_add_u32 v%d, v%d, 10, v%d" % (VQ, T + 2, VQ))
    for t in range(4):
        A.e("v_xor_b32 v%d, %d, v%d" % (VA + t, t, T))
        A.e("v_lshl_add_u32 v%d, v%d, 5, v%d" % (VA + t, VA + t, VQ))
    A.e("v_lshl_or_b32 v%d, v%d, 1, v%d" % (T, T + 7, T + 2))
    A.e("v_lshl_add_u32 v%d, v%d, 10, v%d" % (T + 6, T + 3, T + 6))
    A.e("v_lshl_add_u32 v%d, v%d, 5, v%d" % (VQ + 1, T, T + 6))
    A.e("v_xor_b32 v%d, 2, v%d" % (T, T))
    A.e("v_lshl_add_u32 v%d, v%d, 5, v%d" % (VQ + 2, T, T + 6))
    A.e("v_mul_u32_u24 v%d, 1152, v%d" % (VQ, T + 2))
    A.e("v_lshl_add_u32 v%d, v%d, 8, v%d" % (VQ, T + 3, VQ))
    A.e("v_lshl_add_u32 v%d, v%d, 5, v%d" % (VQ, T + 4, VQ))
    A.e("v_add_u32 v%d, v%d, v%d" % (VQ, T + 5, VQ))
    A.e("v_add_u32 v%d, 4096, v%d" % (VQ, VQ))
    A.e("v_and_b32 v%d, 31, v%d" % (VQS, L))
    A.e("v_lshlrev_b32 v%d, 3, v%d" % (VQS, VQS))
    A.e("v_lshl_add_u32 v%d, v%d, 14, v%d" % (VQS, T + 3, VQS))
    A.e("s_mul_i32 s55, s33, 288")
    for i in range(9):
        A.e("s_add_u32 s%d, s%d, s55" % (40 + i, 40 + i))
        A.e("s_lshl_b32 s%d, s%d, 10" % (40 + i, 40 + i))
        A.e("s_add_u32 s%d, s%d, 0x%x" % (40 + i, 40 + i, HF))
    A.e("s_lshl_b32 s56, s49, 18"); A.e("s_lshl_b32 s57, s33, 8"); A.e("s_add_u32 s56, s56, s57"); A.e("s_add_u32 s56, s56, 0x%x" % QKV)
    A.e("s_mov_b32 s58, 0x%x" % NLOG2E)

    pf = []
    PF0 = opt.get("k1_pf0", 200)
    if opt.get("k1_pf", 1):
        A.e("s_load_dwordx2 s[60:61], s[0:1], 48")
        A.e("s_load_dwordx2 s[62:63], s[0:1], 16")
        A.e("s_and_b32 s59, s13, 3"); A.e("s_mul_i32 s59, s59, %d" % (1152 * 1152))
        A.e("s_lshl_b32 s72, s14, 3"); A.e("s_add_u32 s72, s72, s12")
        A.e("s_mul_i32 s73, s72, %d" % (41 * 128)); A.e("s_add_u32 s59, s59, s73")
        A.e("s_and_b32 s74, s13, 1"); A.e("s_mul_i32 s74, s74, %d" % (288 * 1152)); A.e("s_mul_i32 s73, s72, %d" % (11 * 128)); A.e("s_add_u32 s74, s74, s73")
        A.e("v_lshlrev_b32 v%d, 7, v%d" % (T + 2, L))
        A.e("s_waitcnt lgkmcnt(0)")
        srd(A, 64, 60, SZ_W); srd(A, 68, 62, SZ_WO)
        def pf1():
            A.e("s_mov_b32 exec_hi, 0x1ff")
            A.vmem("buffer_load_dword v%d, v%d, s[64:67], s59 offen" % (T + 3, T + 2), "pf")
            A.e("s_mov_b32 exec_hi, -1")
        def pf2():
            A.e("s_mov_b64 exec, 0x7ff")
            A.vmem("buffer_load_dword v%d, v%d, s[68:71], s74 offen" % (T + 3, T + 2), "pf")
            A.e("s_mov_b64 exec, -1")
        pf = [pf1, pf2]
    seq = []
    groups = []
    for p in range(3):
        nt = 3 if p == 2 else 4
        if p == 0: gl = [[0], [1], [2], [3], [4, 5]]
        else: gl = [[0, 1], [2], [3], [4, 5]]
        for g in gl:
            groups.append((len(seq), [6 * p + st for st in g]))
            for t in range(nt):
                for st in g:
                    for kk6 in range(6):
                        seq.append((p, t, 6 * st + kk6))
    N = len(seq)
    gstart = {g[0]: gi for gi, g in enumerate(groups)}
    fill = [[] for _ in range(N + 40)]
    last = {}; first = {}
    for i, (p, t, ks) in enumerate(seq):
        last[(p, t)] = i
        first.setdefault((p, t), i)
    def ffn_epi(p, t):
        a = ACC + 16 * t
        ops = []
        sreg = 40 + 4 * p + t if p < 2 else 48
        for j in range(8):
            ops.append("v_mul_f32 v%d, v%d, v%d" % (a + 8 + j, a + j, a + 8 + j))
            ops.append("v_mul_f32 v%d, s58, v%d" % (a + j, a + j))
        for j in range(8): ops.append("v_exp_f32 v%d, v%d" % (a + j, a + j))
        for j in range(8): ops.append("v_add_f32 v%d, 1.0, v%d" % (a + j, a + j))
        for j in range(8): ops.append("v_rcp_f32 v%d, v%d" % (a + j, a + j))
        for j in range(8): ops.append("v_mul_f32 v%d, v%d, v%d" % (a + 8 + j, a + j, a + 8 + j))
        for j in range(4): ops.append("v_cvt_pk_bf16_f32 v%d, v%d, v%d" % (a + j, a + 8 + 2 * j, a + 9 + 2 * j))
        ops.append(("vm", "buffer_store_dwordx4 %s, v%d, s[24:27], s%d offen%s" % (v(a, 4), VL16, sreg, STF[opt.get("k1_st", 0)])))
        return ops
    def qkv_epi(t):
        a = ACC + 16 * t
        ops = []
        for j in range(8): ops.append("v_cvt_pk_bf16_f32 v%d, v%d, v%d" % (a + j, a + 2 * j, a + 2 * j + 1))
        for q in range(4):
            ops.append("s_add_u32 s57, s56, 0x%x" % ((8 * (t - 1) + 2 * q) * 16384))
            ops.append(("vm", "buffer_store_dwordx2 %s, v%d, s[28:31], s57 offen%s" % (v(a + 2 * q, 2), VQS, STF[opt.get("k1_st", 0)])))
        return ops
    cur = 0
    RATE = opt.get("k1_nsl", 16)
    tail_ops = []
    for p in range(3):
        for t in range(3 if p == 2 else 4):
            ops = ffn_epi(p, t) if (p < 2 or t == 0) else qkv_epi(t)
            start = max(cur, last[(p, t)] + 4)
            dead = first.get((p + 1, t), None)
            nsl = RATE if p < 2 else (len(ops) + 4) // 5
            for k, op in enumerate(ops):
                fill[start + k * nsl // len(ops)].append(op)
            pos = start + nsl
            cur = pos
            if dead is not None: assert pos - 1 < dead - 1, (p, t, pos, dead)
    awin = {}
    def areg(p, t):
        return (VQ + t) if p == 2 else (VA + t)
    def emit_reads(i):
        p, t, ks = seq[i]
        st, kk6 = divmod(ks, 6)
        ch, kk = divmod(kk6, 2)
        r = areg(p, t)
        win = (st // 2) * 49152
        curw = awin.get(r, 0)
        if win != curw:
            d = win - curw
            if d > 0: A.e("v_add_u32 v%d, 0x%x, v%d" % (r, d, r))
            else: A.e("v_subrev_u32 v%d, 0x%x, v%d" % (r, -d, r))
            awin[r] = win
        base = (st % 2) * 24576 + ch * 8192
        b = AB + 4 * (i % NB)
        for rr in range(2):
            if p < 2: off = base + kk * 4096 + rr * 512
            elif t == 0: off = base + kk * 512 + rr * 128
            else: off = base + kk * 2048 + rr * 512
            if opt.get("k1_noread") and i >= NB: continue
            if opt.get("k1_halfread") and i >= NB and i % 2: continue
            if opt.get("k1_plainread"):
                A.lds("ds_read_b64 %s, v%d offset:%d" % (v(b + 2 * rr, 2), r, off), ("a", i)); continue
            A.lds("ds_read_b64_tr_b16 %s, v%d offset:%d" % (v(b + 2 * rr, 2), r, off), ("a", i))
    pend_dma = []
    def barrier_for(gi):
        stages = groups[gi][1]
        if not opt.get("k1_nodma"):
            for S in stages: assert ("iss", S, 2) in state, ("dma not issued", S)
        A.wait(vm=[("dma", S) for S in stages], lg_all=(gi > 0))
        if opt.get("gstamp") == 1: A.e("s_memtime s[%d:%d]" % (60 + 2 * gi, 61 + 2 * gi))
        if not opt.get("k1_nobar"): A.e("s_barrier")
        if opt.get("gstamp") == 2: A.e("s_memtime s[%d:%d]" % (60 + 2 * gi, 61 + 2 * gi))
        if gi > 0:
            for S in groups[gi - 1][1]:
                if S + 6 < 18 and not opt.get("k1_nodma"):
                    for j in range(3): pend_dma.append(dma_issue(S + 6, j))
    barrier_for(0)
    stamp_mid(A, opt)
    nread = 0
    for i in range(D):
        emit_reads(nread); nread += 1
    for i in range(N):
        p, t, ks = seq[i]
        A.wait(lg=("a", i), vm=("x", ks) if p == 0 else None)
        a = ACC + 16 * t
        c = "0" if first[(p, t)] == i else v(a, 16)
        if opt.get("k1_fake16"):
            for hh in range(2):
                aa = a + 4 * ((2 * i + hh) % 4)
                A.e("v_mfma_f32_16x16x32_bf16 %s, %s, %s, %s" % (v(aa, 4), v(AB + 4 * (i % NB), 4), v(XF + 4 * ((ks + hh) % 36 if p else max(0, ks - hh)), 4), v(aa, 4)))
        elif not opt.get("k1_nomfma"): A.e("v_mfma_f32_32x32x16_bf16 %s, %s, %s, %s" % (v(a, 16), v(AB + 4 * (i % NB), 4), v(XF + 4 * ks, 4), c))
        target = min(N, i + D + 1)
        while nread < target:
            if nread in gstart:
                if nread > i + D - 1 and ("bar", nread) not in state:
                    break
                if ("bar", nread) not in state:
                    barrier_for(gstart[nread]); state[("bar", nread)] = 1
            emit_reads(nread); nread += 1
        for op in fill[i]:
            if isinstance(op, tuple):
                if not opt.get("k1_nost"): A.vmem(op[1], "st")
            elif not opt.get("k1_noepi"): A.e(op)
        if early:
            if i % opt.get("k1_eint", 2) == 0: early.pop(0)()
        elif pend_dma and i % (2 if len(pend_dma) > 6 else 3) == 0:
            pend_dma.pop(0)()
        elif pf and i >= PF0 and i % 4 == 1:
            pf.pop(0)()
    assert not pend_dma
    A.e("s_nop 7"); A.e("s_nop 3")
    for i in range(N, len(fill)):
        for op in fill[i]:
            if isinstance(op, tuple): A.vmem(op[1], "st")
            else: A.e(op)
    if opt.get("gstamp"):
        A.e("s_memtime s[86:87]")
        A.e("s_waitcnt vmcnt(0) lgkmcnt(0)")
        for gi in range(14):
            A.e("s_sub_u32 s%d, s%d, s94" % (60 + 2 * gi, 60 + 2 * gi))
            A.e("v_mov_b32 v%d, s%d" % (gi, 60 + 2 * gi))
        A.e("v_mov_b32 v14, 0"); A.e("v_mov_b32 v15, 0"); A.e("v_mov_b32 v16, 0")
        A.e("s_lshl_b32 s60, s2, 9"); A.e("s_lshl_b32 s61, s12, 6"); A.e("s_add_u32 s60, s60, s61"); A.e("s_add_u32 s60, s60, 0x%x" % (STAMP + 0x80000))
        A.e("s_mov_b32 s26, 0x10000000")
        A.e("s_mov_b64 exec, 1")
        for q in range(4): A.e("buffer_store_dwordx4 v[%d:%d], v16, s[24:27], s60 offen offset:%d" % (4 * q, 4 * q + 3, 16 * q))
        A.e("s_mov_b64 exec, -1")
    stamp_end(A, opt, 1, 0, 12)
    A.label("K1_END")
    A.e("s_endpgm")
    return kernel_desc("k1_gemm1_kernel", 256, 102 if opt.get("stamp") else 80)

HEADER = """; Kernarg layout for this problem (80 bytes, ptrs only, base s[0:1]):
"""

def build(opt):
    A = Asm()
    launches = []
    descs = []
    descs.append(gen_k0(A, opt)); launches.append("; @launch kernel=k0_ln_kernel grid=(256,1,1) block=(256,1,1) lds=0")
    descs.append(gen_k1(A, opt)); launches.append("; @launch kernel=k1_gemm1_kernel grid=(256,1,1) block=(512,1,1) lds=147456")
    if not opt.get("only1"):
        import gen2
        gen2.add(A, opt, launches, descs)
    A.label("CODE_END")
    for i in range(opt.get("extra", 0)):
        if i == 0:
            kernel_begin(A, "kx_empty_kernel"); A.e("s_endpgm"); descs.append(kernel_desc("kx_empty_kernel", 8, 16))
        launches.insert(0 if opt.get("front") else len(launches), "; @launch kernel=kx_empty_kernel grid=(256,1,1) block=(256,1,1) lds=0")
    for k in range(4):
        for i in range(opt.get("dup%d" % k, 0)):
            j = [n for n, l in enumerate(launches) if "kernel=k%d_" % k in l][0]
            launches.insert(j, launches[j])
    return HEADER + "\n".join(launches) + "\n" + '.amdgcn_target "amdgcn-amd-amdhsa--gfx950"\n' + A.text() + "".join(descs)

if __name__ == "__main__":
    opt = {}
    out = "cdna_kernels/%s.s" % NAME
    for a in sys.argv[1:]:
        if a.startswith("out="): out = a[4:]
        else:
            k, val = a.split("="); opt[k] = int(val)
    open(out, "w").write(build(opt))
    print("wrote", out)
```

```python
import sys
from asmlib import *

NAME = "parallel_sum__sliding_local_dilated__glu_gated_swiglu__prompt"
XNF  = 0x0000000
HF   = 0x0300000
QKV  = 0x1600000
PART = 0x1E00000
PSET = 64 * 36 * 1024
WS_SIZE = PART + 6 * PSET
SZ_X = 2048 * 576 * 2
SZ_WQKV = 576 * 1728 * 2
SZ_WO = 576 * 576 * 2
SZ_W = 576 * 4608 * 2
STF = ["", " sc1", " nt", " sc0 sc1", " sc1 nt"]
LOG2E = 0x3fb8aa3b
NLOG2E = 0xbfb8aa3b

def f2u(x):
    import struct
    return struct.unpack("<I", struct.pack("<f", x))[0]

STAMP = 0x3000000
def stamp_begin(A, opt):
    if not opt.get("stamp"): return
    A.e("s_memrealtime s[92:93]")
    A.e("s_memtime s[94:95]")
def stamp_mid(A, opt, idx=0):
    if not opt.get("stamp"): return
    A.e("s_memtime s[88:89]")
def stamp_end(A, opt, kid, vt, wave_sgpr=None):
    if not opt.get("stamp"): return
    A.e("s_waitcnt vmcnt(0) lgkmcnt(0)")
    A.e("s_memrealtime s[96:97]")
    A.e("s_memtime s[98:99]")
    if opt.get("stamp") == 2:
        A.e("s_load_dwordx2 s[84:85], s[0:1], 64")
        A.e("s_waitcnt lgkmcnt(0)")
        A.e("s_add_u32 s80, s84, %d" % ((3 - kid) * 512)); A.e("s_addc_u32 s81, s85, 0"); A.e("s_and_b32 s81, s81, 0xffff"); A.e("s_mov_b32 s82, 256"); A.e("s_mov_b32 s83, 0x00020000")
        A.e("s_sub_u32 s98, s98, s94"); A.e("s_sub_u32 s88, s88, s94"); A.e("s_not_b32 s92, s92")
        A.e("v_mov_b32 v%d, s92" % vt); A.e("v_mov_b32 v%d, s96" % (vt + 1)); A.e("v_mov_b32 v%d, s98" % (vt + 2)); A.e("v_mov_b32 v%d, s88" % (vt + 3))
        A.e("v_mov_b32 v%d, 0" % (vt + 4))
        A.e("s_mov_b64 exec, 1")
        A.e("s_mul_i32 s86, s2, 37"); A.e("s_and_b32 s86, s86, 0x1f"); A.e("s_cmp_eq_u32 s86, 0"); A.e("s_cselect_b32 s82, s82, 0")
        for q in range(4): A.e("buffer_atomic_umax v%d, v%d, s[80:83], 0 offen offset:%d" % (vt + q, vt + 4, kid * 16 + q * 4))
        return
    A.e("s_load_dwordx2 s[84:85], s[0:1], 72")
    A.e("s_waitcnt lgkmcnt(0)")
    A.e("s_mov_b32 s80, s84"); A.e("s_and_b32 s81, s85, 0xffff"); A.e("s_mov_b32 s82, 0x10000000"); A.e("s_mov_b32 s83, 0x00020000")
    A.e("s_lshl_b32 s86, s2, 8")
    if wave_sgpr is not None:
        A.e("s_lshl_b32 s87, s%d, 5" % wave_sgpr); A.e("s_add_u32 s86, s86, s87")
    A.e("s_add_u32 s86, s86, 0x%x" % (STAMP + kid * 65536))
    A.e("s_sub_u32 s98, s98, s94")
    A.e("s_sub_u32 s88, s88, s94")
    A.e("v_mov_b32 v%d, s92" % vt); A.e("v_mov_b32 v%d, s96" % (vt + 1)); A.e("v_mov_b32 v%d, s98" % (vt + 2)); A.e("v_mov_b32 v%d, s88" % (vt + 3))
    A.e("v_mov_b32 v%d, 0" % (vt + 4))
    A.e("s_mov_b64 exec, 1")
    A.e("buffer_store_dwordx4 v[%d:%d], v%d, s[80:83], s86 offen" % (vt, vt + 3, vt + 4))

def gen_k0(A, opt):
    kernel_begin(A, "k0_ln_kernel")
    A.e("s_cmp_ge_u32 s2, 256")
    A.e("s_cbranch_scc1 K0_END")
    stamp_begin(A, opt); stamp_mid(A, opt)
    A.e("s_load_dwordx2 s[4:5], s[0:1], 0")
    A.e("s_load_dwordx2 s[6:7], s[0:1], 72")
    if opt.get("k0_cpf"):
        A.e("s_getpc_b64 s[40:41]")
        A.label("K0_PC")
        A.e("s_and_b32 s41, s41, 0xffff")
        A.e("s_mov_b32 s42, CODE_END-K0_PC")
        A.e("s_mov_b32 s43, 0x00020000")
        A.e("v_lshlrev_b32 v50, 7, v0")
        A.e("s_mov_b32 s44, 32768")
        A.e("buffer_load_dword v51, v50, s[40:43], 0 offen")
        A.e("buffer_load_dword v52, v50, s[40:43], s44 offen")
    A.e("v_lshrrev_b32 v1, 5, v0")
    A.e("v_and_b32 v2, 31, v0")
    A.e("s_lshl_b32 s3, s2, 3")
    A.e("v_add_u32 v1, s3, v1")
    A.e("v_mul_u32_u24 v3, 1152, v1")
    A.e("v_lshl_add_u32 v3, v2, 4, v3")
    A.e("v_cmp_gt_u32 vcc, 8, v2")
    A.e("s_mov_b64 s[20:21], vcc")
    A.e("s_waitcnt lgkmcnt(0)")
    srd(A, 8, 4, SZ_X)
    srd(A, 12, 6, WS_SIZE)
    for r in range(16, 20): pass
    for i in range(12, 16): pass
    A.e("v_mov_b32 v16, 0"); A.e("v_mov_b32 v17, 0"); A.e("v_mov_b32 v18, 0"); A.e("v_mov_b32 v19, 0")
    A.e("buffer_load_dwordx4 v[8:11], v3, s[8:11], 0 offen")
    A.e("buffer_load_dwordx4 v[12:15], v3, s[8:11], 0 offen offset:512")
    A.e("s_mov_b64 exec, s[20:21]")
    A.e("buffer_load_dwordx4 v[16:19], v3, s[8:11], 0 offen offset:1024")
    A.e("s_mov_b64 exec, -1")
    if opt.get("k0_pf", 1):
        A.e("s_load_dwordx4 s[24:27], s[0:1], 32")
        A.e("s_and_b32 s36, s2, 7"); A.e("s_lshr_b32 s37, s2, 3")
        if opt.get("k1_map", 0) == 0:
            A.e("s_and_b32 s38, s36, 3"); A.e("s_lshl_b32 s38, s38, 3"); A.e("s_lshr_b32 s39, s37, 2"); A.e("s_add_u32 s38, s38, s39")
            A.e("s_and_b32 s39, s37, 3"); nrow = 144
        else:
            A.e("s_lshl_b32 s38, s36, 2"); A.e("s_lshr_b32 s39, s37, 3"); A.e("s_add_u32 s38, s38, s39")
            A.e("s_and_b32 s39, s37, 7"); nrow = 72
        A.e("s_mul_i32 s38, s38, 9"); A.e("s_add_u32 s38, s38, 3"); A.e("s_and_b32 s38, s38, 0xfffffffc"); A.e("s_lshl_b32 s38, s38, 5")
        A.e("s_mul_i32 s39, s39, %d" % (nrow * 9216)); A.e("s_add_u32 s38, s38, s39")
        A.e("v_mul_u32_u24 v20, 9216, v0")
        A.e("v_cmp_gt_u32 vcc, %d, v0" % nrow)
        A.e("v_mov_b32 v21, 0x7fffffff")
        A.e("s_nop 0")
        A.e("v_cndmask_b32 v20, v21, v20, vcc")
        A.e("s_waitcnt lgkmcnt(0)")
        srd(A, 28, 24, SZ_W); srd(A, 32, 26, SZ_W)
        A.e("buffer_load_dword v22, v20, s[28:31], s38 offen")
        A.e("buffer_load_dword v23, v20, s[32:35], s38 offen")
    A.e("v_lshrrev_b32 v4, 5, v1")
    A.e("v_mul_u32_u24 v4, 36, v4")
    A.e("v_lshrrev_b32 v5, 1, v2")
    A.e("v_add_u32 v4, v4, v5")
    A.e("v_lshlrev_b32 v4, 6, v4")
    A.e("v_and_b32 v5, 1, v2")
    A.e("v_lshl_add_u32 v4, v5, 5, v4")
    A.e("v_and_b32 v5, 31, v1")
    A.e("v_add_u32 v4, v4, v5")
    A.e("v_lshlrev_b32 v4, 4, v4")
    A.e("s_mov_b32 s16, 0x%x" % (XNF))
    A.e("s_mov_b32 s17, 0x%x" % (XNF + 16384))
    A.e("s_mov_b32 s18, 0x%x" % (XNF + 32768))
    A.e("s_mov_b32 s19, 0x%x" % f2u(1.0 / 576.0))
    A.e("s_waitcnt vmcnt(%d)" % (2 if opt.get("k0_pf", 1) else 0))
    for i in range(12):
        A.e("v_lshlrev_b32 v%d, 16, v%d" % (24 + 2 * i, 8 + i))
        A.e("v_and_b32 v%d, 0xffff0000, v%d" % (25 + 2 * i, 8 + i))
    def reduce32(r, t):
        A.e("s_nop 1")
        A.e("v_add_f32_dpp v%d, v%d, v%d quad_perm:[1,0,3,2] row_mask:0xf bank_mask:0xf" % (r, r, r))
        A.e("s_nop 1")
        A.e("v_add_f32_dpp v%d, v%d, v%d quad_perm:[2,3,0,1] row_mask:0xf bank_mask:0xf" % (r, r, r))
        A.e("s_nop 1")
        A.e("v_add_f32_dpp v%d, v%d, v%d row_half_mirror row_mask:0xf bank_mask:0xf" % (r, r, r))
        A.e("s_nop 1")
        A.e("v_add_f32_dpp v%d, v%d, v%d row_mirror row_mask:0xf bank_mask:0xf" % (r, r, r))
        A.e("v_mov_b32 v%d, v%d" % (t, r))
        A.e("s_nop 1")
        A.e("v_permlane16_swap_b32 v%d, v%d" % (r, t))
        A.e("s_nop 1")
        A.e("v_add_f32 v%d, v%d, v%d" % (r, r, t))
    A.e("v_add_f32 v6, v24, v25")
    A.e("v_add_f32 v7, v26, v27")
    for i in range(4, 24, 2):
        A.e("v_add_f32 v6, v6, v%d" % (24 + i))
        A.e("v_add_f32 v7, v7, v%d" % (25 + i))
    A.e("v_add_f32 v6, v6, v7")
    reduce32(6, 7)
    A.e("v_mul_f32 v6, s19, v6")
    A.e("v_mov_b32 v20, 0"); A.e("v_mov_b32 v21, 0")
    for i in range(0, 24, 2):
        if i == 16: A.e("s_mov_b64 exec, s[20:21]")
        A.e("v_sub_f32 v48, v%d, v6" % (24 + i))
        A.e("v_sub_f32 v49, v%d, v6" % (25 + i))
        A.e("v_fmac_f32 v20, v48, v48")
        A.e("v_fmac_f32 v21, v49, v49")
    A.e("s_mov_b64 exec, -1")
    A.e("v_add_f32 v20, v20, v21")
    reduce32(20, 21)
    A.e("v_mul_f32 v20, s19, v20")
    def rbf(r):
        A.e("v_cvt_pk_bf16_f32 v%d, v%d, v%d" % (r, r, r))
        A.e("v_and_b32 v%d, 0xffff0000, v%d" % (r, r))
    rbf(6); rbf(20)
    A.e("v_add_f32 v20, 0x%x, v20" % f2u(1e-5))
    rbf(20)
    A.e("v_sqrt_f32 v20, v20")
    A.e("s_nop 0")
    rbf(20)
    A.e("v_rcp_f32 v20, v20")
    for i in range(12):
        a, b = 24 + 2 * i, 25 + 2 * i
        A.e("v_sub_f32 v%d, v%d, v6" % (a, a))
        A.e("v_sub_f32 v%d, v%d, v6" % (b, b))
        A.e("v_cvt_pk_bf16_f32 v48, v%d, v%d" % (a, b))
        A.e("v_lshlrev_b32 v%d, 16, v48" % a)
        A.e("v_and_b32 v%d, 0xffff0000, v48" % b)
        A.e("v_mul_f32 v%d, v%d, v20" % (a, a))
        A.e("v_mul_f32 v%d, v%d, v20" % (b, b))
        A.e("v_cvt_pk_bf16_f32 v%d, v%d, v%d" % (8 + i, a, b))
    A.e("buffer_store_dwordx4 v[8:11], v4, s[12:15], s16 offen")
    A.e("buffer_store_dwordx4 v[12:15], v4, s[12:15], s17 offen")
    A.e("s_mov_b64 exec, s[20:21]")
    A.e("buffer_store_dwordx4 v[16:19], v4, s[12:15], s18 offen")
    stamp_end(A, opt, 0, 24)
    A.label("K0_END")
    A.e("s_endpgm")
    return kernel_desc("k0_ln_kernel", 56, 102 if opt.get("stamp") else 48)

def gen_k1(A, opt):
    D = opt.get("k1_D", 4)
    NB = D + 1
    kernel_begin(A, "k1_gemm1_kernel")
    XF = 0
    ACC = 144
    AB = 208
    VA = 232
    VQ = 236
    VO = 239
    VL16 = 242
    VQS = 243
    T = 244
    assert NB * 4 <= 24
    A.e("s_cmp_ge_u32 s2, 256")
    A.e("s_cbranch_scc1 K1_END")
    stamp_begin(A, opt)
    A.e("s_load_dwordx2 s[4:5], s[0:1], 8")
    A.e("s_load_dwordx4 s[8:11], s[0:1], 32")
    A.e("s_load_dwordx2 s[6:7], s[0:1], 72")
    A.e("v_lshrrev_b32 v%d, 6, v0" % T)
    A.e("v_and_b32 v%d, 63, v0" % (T + 1))
    A.e("v_readfirstlane_b32 s12, v%d" % T)
    L = T + 1
    A.e("s_and_b32 s13, s2, 7")
    A.e("s_lshr_b32 s14, s2, 3")
    if opt.get("k1_map", 0) == 0:
        A.e("s_lshr_b32 s15, s13, 2"); A.e("s_lshl_b32 s15, s15, 2"); A.e("s_and_b32 s32, s14, 3"); A.e("s_add_u32 s15, s15, s32")
        A.e("s_and_b32 s32, s13, 3"); A.e("s_lshl_b32 s32, s32, 3"); A.e("s_lshr_b32 s33, s14, 2"); A.e("s_add_u32 s32, s32, s33")
    else:
        A.e("s_and_b32 s15, s14, 7")
        A.e("s_lshl_b32 s32, s13, 2"); A.e("s_lshr_b32 s33, s14, 3"); A.e("s_add_u32 s32, s32, s33")
    SMT, SG = 15, 32
    A.e("s_lshl_b32 s33, s%d, 3" % SMT); A.e("s_add_u32 s33, s33, s12")
    A.e("v_lshlrev_b32 v%d, 4, v%d" % (VL16, L))
    A.e("s_mul_i32 s34, s%d, 9" % SG)
    A.e("s_add_u32 s35, s34, 3"); A.e("s_and_b32 s35, s35, 0xfffffffc")
    A.e("s_sub_u32 s36, s35, s34")
    A.e("s_cmp_eq_u32 s36, 1"); A.e("s_cselect_b32 s37, 1, 0")
    for t in range(4):
        A.e("s_add_u32 s%d, s35, %d" % (40 + t, t))
    for t in range(4):
        A.e("s_add_u32 s38, s37, %d" % t)
        A.e("s_cmp_ge_u32 s38, s36"); A.e("s_cselect_b32 s39, 4, 0")
        A.e("s_add_u32 s38, s38, s39"); A.e("s_add_u32 s%d, s38, s34" % (44 + t))
    A.e("s_cmp_eq_u32 s36, 1"); A.e("s_cselect_b32 s38, 0, 8"); A.e("s_add_u32 s48, s38, s34")
    A.e("s_and_b32 s38, s12, 1")
    A.e("s_lshl_b32 s39, s38, 1")
    A.e("v_lshrrev_b32 v%d, 3, v%d" % (T + 2, L))
    A.e("v_bfe_u32 v%d, v%d, 1, 2" % (T + 3, L))
    A.e("v_bfe_u32 v%d, v%d, 4, 1" % (T + 4, L))
    A.e("v_or_b32 v%d, s39, v%d" % (T + 5, T + 4))
    A.e("v_xor_b32 v%d, v%d, v%d" % (T + 5, T + 5, T + 3))
    A.e("s_lshr_b32 s39, s12, 1"); A.e("s_lshl_b32 s39, s39, 3")
    A.e("v_add_u32 v%d, s39, v%d" % (T + 6, T + 2))
    A.e("v_mul_u32_u24 v%d, 9216, v%d" % (T + 6, T + 6))
    A.e("v_and_b32 v%d, 1, v%d" % (T + 7, L))
    A.e("v_lshl_add_u32 v%d, v%d, 4, v%d" % (T + 6, T + 7, T + 6))
    A.e("v_add_u32 v%d, s35, v%d" % (VO, T + 5))
    A.e("v_lshl_add_u32 v%d, v%d, 5, v%d" % (VO, VO, T + 6))
    A.e("v_add_u32 v%d, s37, v%d" % (VO + 1, T + 5))
    A.e("v_cmp_le_u32 vcc, s36, v%d" % (VO + 1))
    A.e("v_add_u32 v%d, s34, v%d" % (VO + 1, VO + 1))
    A.e("v_add_u32 v%d, 4, v%d" % (VO + 2, VO + 1))
    A.e("v_cndmask_b32 v%d, v%d, v%d, vcc" % (VO + 1, VO + 1, VO + 2))
    A.e("v_lshl_add_u32 v%d, v%d, 5, v%d" % (VO + 1, VO + 1, T + 6))
    A.e("s_min_u32 s49, s%d, 26" % SG)
    A.e("v_lshlrev_b32 v%d, 1, v%d" % (T + 4, T + 4))
    A.e("v_xor_b32 v%d, v%d, v%d" % (T + 4, T + 4, T + 3))
    A.e("s_lshl_b32 s39, s12, 3")
    A.e("v_add_u32 v%d, s39, v%d" % (T + 2, T + 2))
    A.e("v_mul_u32_u24 v%d, 3456, v%d" % (T + 2, T + 2))
    A.e("v_lshl_add_u32 v%d, v%d, 5, v%d" % (T + 2, T + 4, T + 2))
    A.e("s_lshl_b32 s39, s49, 7")
    A.e("v_add_u32 v%d, s39, v%d" % (T + 2, T + 2))
    A.e("v_lshrrev_b32 v%d, 1, v%d" % (T + 3, L))
    A.e("v_mul_u32_u24 v%d, 9216, v%d" % (T + 3, T + 3))
    A.e("s_lshl_b32 s39, s48, 5")
    A.e("v_add_u32 v%d, s39, v%d" % (T + 3, T + 3))
    A.e("s_cmp_lt_u32 s12, 4")
    A.e("s_cselect_b64 vcc, -1, 0")
    A.e("v_cndmask_b32 v%d, v%d, v%d, vcc" % (VO + 2, T + 3, T + 2))
    A.e("v_lshl_add_u32 v%d, v%d, 4, v%d" % (VO + 2, T + 7, VO + 2))
    A.e("s_mov_b32 s51, %d" % (32 * 9216))
    A.e("s_cselect_b32 s51, %d, s51" % (32 * 3456))
    A.e("s_lshl_b32 s52, s12, 10")
    A.e("s_cmp_eq_u32 s12, 5"); A.e("s_cselect_b32 s53, %d, s52" % (5 * 1024 + 128))
    A.e("s_cmp_ge_u32 s12, 6"); A.e("s_cselect_b32 s53, %d, s53" % (7 * 1024))
    A.e("s_waitcnt lgkmcnt(0)")
    A.e("s_bitcmp1_b32 s12, 0")
    A.e("s_cselect_b64 s[16:17], s[10:11], s[8:9]")
    A.e("s_and_b32 s17, s17, 0xffff")
    A.e("s_mov_b32 s18, 0x%x" % SZ_W); A.e("s_mov_b32 s19, 0x00020000")
    A.e("s_cmp_lt_u32 s12, 4")
    A.e("s_cselect_b64 s[20:21], s[4:5], s[16:17]")
    A.e("s_cselect_b32 s22, 0x%x, s18" % SZ_WQKV)
    A.e("s_and_b32 s21, s21, 0xffff")
    A.e("s_cmp_ge_u32 s12, 6"); A.e("s_cselect_b32 s22, 0, s22")
    A.e("s_mov_b32 s23, 0x00020000")
    srd(A, 24, 6, WS_SIZE)
    srd(A, 28, 6, WS_SIZE)
    A.e("s_cmp_ge_u32 s%d, 27" % SG); A.e("s_cselect_b32 s30, 0, s30")
    A.e("s_mul_i32 s54, s33, %d" % (36 * 1024))
    if XNF: A.e("s_add_u32 s54, s54, 0x%x" % XNF)
    A.e("s_mov_b32 s50, 0")
    state = {"n": 0}
    def dma_issue(S, j):
        p, st = divmod(S, 6)
        ldsoff = st * 24576 + j * 8192
        base = 53 if p == 2 else 52
        def f():
            if S == 6 or S == 12:
                if j == 0: A.e("s_mov_b32 s50, 0")
            state[("iss", S, j)] = 1
            A.e("s_add_u32 m0, s%d, 0x%x" % (base, ldsoff))
            A.e("s_nop 0")
            A.vmem("buffer_load_dwordx4 v%d, s[%d:%d], s50 offen lds" % (VO + p, 20 if p == 2 else 16, 23 if p == 2 else 19), ("dma", S))
            if p == 2: A.e("s_add_u32 s50, s50, s51")
            else: A.e("s_add_u32 s50, s50, %d" % (32 * 9216))
        return f
    def x_issue(ks):
        def f():
            if ks % 4 == 0 and ks > 0: A.e("s_add_u32 s54, s54, 4096")
            A.vmem("buffer_load_dwordx4 %s, v%d, s[24:27], s54 offen offset:%d" % (v(XF + 4 * ks, 4), VL16, (ks % 4) * 1024), ("x", ks))
        return f
    PRE = opt.get("k1_pre", 2)
    early = []
    for S in range(6):
        fs = [x_issue(ks) for ks in range(6 * S, 6 * S + 6)] + [dma_issue(S, j) for j in range(3)]
        if S < PRE:
            for f in fs: f()
        else: early.extend(fs)
    A.e("v_bfe_u32 v%d, v%d, 4, 1" % (T + 2, L))
    A.e("v_bfe_u32 v%d, v%d, 5, 1" % (T + 3, L))
    A.e("v_bfe_u32 v%d, v%d, 2, 2" % (T + 4, L))
    A.e("v_and_b32 v%d, 3, v%d" % (T + 5, L))
    A.e("v_lshlrev_b32 v%d, 3, v%d" % (T + 5, T + 5))
    A.e("v_lshl_add_u32 v%d, v%d, 7, v%d" % (T + 6, T + 4, T + 5))
    A.e("v_bfe_u32 v%d, v%d, 3, 1" % (T + 7, L))
    A.e("v_lshl_or_b32 v%d, v%d, 1, v%d" % (T, T + 2, T + 7))
    A.e("v_lshl_add_u32 v%d, v%d, 11, v%d" % (VQ, T + 3, T + 6))
    A.e("v_lshl_add_u32 v%d, v%d, 10, v%d" % (VQ, T + 2, VQ))
    for t in range(4):
        A.e("v_xor_b32 v%d, %d, v%d" % (VA + t, t, T))
        A.e("v_lshl_add_u32 v%d, v%d, 5, v%d" % (VA + t, VA + t, VQ))
    A.e("v_lshl_or_b32 v%d, v%d, 1, v%d" % (T, T + 7, T + 2))
    A.e("v_lshl_add_u32 v%d, v%d, 10, v%d" % (T + 6, T + 3, T + 6))
    A.e("v_lshl_add_u32 v%d, v%d, 5, v%d" % (VQ + 1, T, T + 6))
    A.e("v_xor_b32 v%d, 2, v%d" % (T, T))
    A.e("v_lshl_add_u32 v%d, v%d, 5, v%d" % (VQ + 2, T, T + 6))
    A.e("v_mul_u32_u24 v%d, 1152, v%d" % (VQ, T + 2))
    A.e("v_lshl_add_u32 v%d, v%d, 8, v%d" % (VQ, T + 3, VQ))
    A.e("v_lshl_add_u32 v%d, v%d, 5, v%d" % (VQ, T + 4, VQ))
    A.e("v_add_u32 v%d, v%d, v%d" % (VQ, T + 5, VQ))
    A.e("v_add_u32 v%d, 4096, v%d" % (VQ, VQ))
    A.e("v_and_b32 v%d, 31, v%d" % (VQS, L))
    A.e("v_lshlrev_b32 v%d, 3, v%d" % (VQS, VQS))
    A.e("v_lshl_add_u32 v%d, v%d, 14, v%d" % (VQS, T + 3, VQS))
    A.e("s_mul_i32 s55, s33, 288")
    for i in range(9):
        A.e("s_add_u32 s%d, s%d, s55" % (40 + i, 40 + i))
        A.e("s_lshl_b32 s%d, s%d, 10" % (40 + i, 40 + i))
        A.e("s_add_u32 s%d, s%d, 0x%x" % (40 + i, 40 + i, HF))
    A.e("s_lshl_b32 s56, s49, 18"); A.e("s_lshl_b32 s57, s33, 8"); A.e("s_add_u32 s56, s56, s57"); A.e("s_add_u32 s56, s56, 0x%x" % QKV)
    A.e("s_mov_b32 s58, 0x%x" % NLOG2E)

    pf = []
    PF0 = opt.get("k1_pf0", 200)
    if opt.get("k1_pf", 1):
        A.e("s_load_dwordx2 s[60:61], s[0:1], 48")
        A.e("s_load_dwordx2 s[62:63], s[0:1], 16")
        A.e("s_and_b32 s59, s13, 3"); A.e("s_mul_i32 s59, s59, %d" % (1152 * 1152))
        A.e("s_lshl_b32 s72, s14, 3"); A.e("s_add_u32 s72, s72, s12")
        A.e("s_mul_i32 s73, s72, %d" % (41 * 128)); A.e("s_add_u32 s59, s59, s73")
        A.e("s_and_b32 s74, s13, 1"); A.e("s_mul_i32 s74, s74, %d" % (288 * 1152)); A.e("s_mul_i32 s73, s72, %d" % (11 * 128)); A.e("s_add_u32 s74, s74, s73")
        A.e("v_lshlrev_b32 v%d, 7, v%d" % (T + 2, L))
        A.e("s_waitcnt lgkmcnt(0)")
        srd(A, 64, 60, SZ_W); srd(A, 68, 62, SZ_WO)
        def pf1():
            A.e("s_mov_b32 exec_hi, 0x1ff")
            A.vmem("buffer_load_dword v%d, v%d, s[64:67], s59 offen" % (T + 3, T + 2), "pf")
            A.e("s_mov_b32 exec_hi, -1")
        def pf2():
            A.e("s_mov_b64 exec, 0x7ff")
            A.vmem("buffer_load_dword v%d, v%d, s[68:71], s74 offen" % (T + 3, T + 2), "pf")
            A.e("s_mov_b64 exec, -1")
        pf = [pf1, pf2]
    seq = []
    groups = []
    for p in range(3):
        nt = 3 if p == 2 else 4
        if p == 0: gl = [[0], [1], [2], [3], [4, 5]]
        else: gl = [[0, 1], [2], [3], [4, 5]]
        for g in gl:
            groups.append((len(seq), [6 * p + st for st in g]))
            for t in range(nt):
                for st in g:
                    for kk6 in range(6):
                        seq.append((p, t, 6 * st + kk6))
    N = len(seq)
    gstart = {g[0]: gi for gi, g in enumerate(groups)}
    fill = [[] for _ in range(N + 40)]
    last = {}; first = {}
    for i, (p, t, ks) in enumerate(seq):
        last[(p, t)] = i
        first.setdefault((p, t), i)
    def ffn_epi(p, t):
        a = ACC + 16 * t
        ops = []
        sreg = 40 + 4 * p + t if p < 2 else 48
        for j in range(8):
            ops.append("v_mul_f32 v%d, v%d, v%d" % (a + 8 + j, a + j, a + 8 + j))
            ops.append("v_mul_f32 v%d, s58, v%d" % (a + j, a + j))
        for j in range(8): ops.append("v_exp_f32 v%d, v%d" % (a + j, a + j))
        for j in range(8): ops.append("v_add_f32 v%d, 1.0, v%d" % (a + j, a + j))
        for j in range(8): ops.append("v_rcp_f32 v%d, v%d" % (a + j, a + j))
        for j in range(8): ops.append("v_mul_f32 v%d, v%d, v%d" % (a + 8 + j, a + j, a + 8 + j))
        for j in range(4): ops.append("v_cvt_pk_bf16_f32 v%d, v%d, v%d" % (a + j, a + 8 + 2 * j, a + 9 + 2 * j))
        ops.append(("vm", "buffer_store_dwordx4 %s, v%d, s[24:27], s%d offen%s" % (v(a, 4), VL16, sreg, STF[opt.get("k1_st", 0)])))
        return ops
    def qkv_epi(t):
        a = ACC + 16 * t
        ops = []
        for j in range(8): ops.append("v_cvt_pk_bf16_f32 v%d, v%d, v%d" % (a + j, a + 2 * j, a + 2 * j + 1))
        for q in range(4):
            ops.append("s_add_u32 s57, s56, 0x%x" % ((8 * (t - 1) + 2 * q) * 16384))
            ops.append(("vm", "buffer_store_dwordx2 %s, v%d, s[28:31], s57 offen%s" % (v(a + 2 * q, 2), VQS, STF[opt.get("k1_st", 0)])))
        return ops
    cur = 0
    RATE = opt.get("k1_nsl", 16)
    tail_ops = []
    for p in range(3):
        for t in range(3 if p == 2 else 4):
            ops = ffn_epi(p, t) if (p < 2 or t == 0) else qkv_epi(t)
            start = max(cur, last[(p, t)] + 4)
            dead = first.get((p + 1, t), None)
            nsl = RATE if p < 2 else (len(ops) + 4) // 5
            for k, op in enumerate(ops):
                fill[start + k * nsl // len(ops)].append(op)
            pos = start + nsl
            cur = pos
            if dead is not None: assert pos - 1 < dead - 1, (p, t, pos, dead)
    awin = {}
    def areg(p, t):
        return (VQ + t) if p == 2 else (VA + t)
    def emit_reads(i):
        p, t, ks = seq[i]
        st, kk6 = divmod(ks, 6)
        ch, kk = divmod(kk6, 2)
        r = areg(p, t)
        win = (st // 2) * 49152
        curw = awin.get(r, 0)
        if win != curw:
            d = win - curw
            if d > 0: A.e("v_add_u32 v%d, 0x%x, v%d" % (r, d, r))
            else: A.e("v_subrev_u32 v%d, 0x%x, v%d" % (r, -d, r))
            awin[r] = win
        base = (st % 2) * 24576 + ch * 8192
        b = AB + 4 * (i % NB)
        for rr in range(2):
            if p < 2: off = base + kk * 4096 + rr * 512
            elif t == 0: off = base + kk * 512 + rr * 128
            else: off = base + kk * 2048 + rr * 512
            if opt.get("k1_noread") and i >= NB: continue
            if opt.get("k1_halfread") and i >= NB and i % 2: continue
            if opt.get("k1_plainread"):
                A.lds("ds_read_b64 %s, v%d offset:%d" % (v(b + 2 * rr, 2), r, off), ("a", i)); continue
            A.lds("ds_read_b64_tr_b16 %s, v%d offset:%d" % (v(b + 2 * rr, 2), r, off), ("a", i))
    pend_dma = []
    def barrier_for(gi):
        stages = groups[gi][1]
        if not opt.get("k1_nodma"):
            for S in stages: assert ("iss", S, 2) in state, ("dma not issued", S)
        A.wait(vm=[("dma", S) for S in stages], lg_all=(gi > 0))
        if opt.get("gstamp") == 1: A.e("s_memtime s[%d:%d]" % (60 + 2 * gi, 61 + 2 * gi))
        if not opt.get("k1_nobar"): A.e("s_barrier")
        if opt.get("gstamp") == 2: A.e("s_memtime s[%d:%d]" % (60 + 2 * gi, 61 + 2 * gi))
        if gi > 0:
            for S in groups[gi - 1][1]:
                if S + 6 < 18 and not opt.get("k1_nodma"):
                    for j in range(3): pend_dma.append(dma_issue(S + 6, j))
    barrier_for(0)
    stamp_mid(A, opt)
    nread = 0
    for i in range(D):
        emit_reads(nread); nread += 1
    for i in range(N):
        p, t, ks = seq[i]
        A.wait(lg=("a", i), vm=("x", ks) if p == 0 else None)
        a = ACC + 16 * t
        c = "0" if first[(p, t)] == i else v(a, 16)
        if opt.get("k1_fake16"):
            for hh in range(2):
                aa = a + 4 * ((2 * i + hh) % 4)
                A.e("v_mfma_f32_16x16x32_bf16 %s, %s, %s, %s" % (v(aa, 4), v(AB + 4 * (i % NB), 4), v(XF + 4 * ((ks + hh) % 36 if p else max(0, ks - hh)), 4), v(aa, 4)))
        elif not opt.get("k1_nomfma"): A.e("v_mfma_f32_32x32x16_bf16 %s, %s, %s, %s" % (v(a, 16), v(AB + 4 * (i % NB), 4), v(XF + 4 * ks, 4), c))
        target = min(N, i + D + 1)
        while nread < target:
            if nread in gstart:
                if nread > i + D - 1 and ("bar", nread) not in state:
                    break
                if ("bar", nread) not in state:
                    barrier_for(gstart[nread]); state[("bar", nread)] = 1
            emit_reads(nread); nread += 1
        for op in fill[i]:
            if isinstance(op, tuple):
                if not opt.get("k1_nost"): A.vmem(op[1], "st")
            elif not opt.get("k1_noepi"): A.e(op)
        if early:
            if i % opt.get("k1_eint", 2) == 0: early.pop(0)()
        elif pend_dma and i % (2 if len(pend_dma) > 6 else 3) == 0:
            pend_dma.pop(0)()
        elif pf and i >= PF0 and i % 4 == 1:
            pf.pop(0)()
    assert not pend_dma
    A.e("s_nop 7"); A.e("s_nop 3")
    for i in range(N, len(fill)):
        for op in fill[i]:
            if isinstance(op, tuple): A.vmem(op[1], "st")
            else: A.e(op)
    if opt.get("gstamp"):
        A.e("s_memtime s[86:87]")
        A.e("s_waitcnt vmcnt(0) lgkmcnt(0)")
        for gi in range(14):
            A.e("s_sub_u32 s%d, s%d, s94" % (60 + 2 * gi, 60 + 2 * gi))
            A.e("v_mov_b32 v%d, s%d" % (gi, 60 + 2 * gi))
        A.e("v_mov_b32 v14, 0"); A.e("v_mov_b32 v15, 0"); A.e("v_mov_b32 v16, 0")
        A.e("s_lshl_b32 s60, s2, 9"); A.e("s_lshl_b32 s61, s12, 6"); A.e("s_add_u32 s60, s60, s61"); A.e("s_add_u32 s60, s60, 0x%x" % (STAMP + 0x80000))
        A.e("s_mov_b32 s26, 0x10000000")
        A.e("s_mov_b64 exec, 1")
        for q in range(4): A.e("buffer_store_dwordx4 v[%d:%d], v16, s[24:27], s60 offen offset:%d" % (4 * q, 4 * q + 3, 16 * q))
        A.e("s_mov_b64 exec, -1")
    stamp_end(A, opt, 1, 0, 12)
    A.label("K1_END")
    A.e("s_endpgm")
    return kernel_desc("k1_gemm1_kernel", 256, 102 if opt.get("stamp") else 80)

HEADER = """; Kernarg layout for this problem (80 bytes, ptrs only, base s[0:1]):
"""

def build(opt):
    A = Asm()
    launches = []
    descs = []
    descs.append(gen_k0(A, opt)); launches.append("; @launch kernel=k0_ln_kernel grid=(256,1,1) block=(256,1,1) lds=0")
    descs.append(gen_k1(A, opt)); launches.append("; @launch kernel=k1_gemm1_kernel grid=(256,1,1) block=(512,1,1) lds=147456")
    if not opt.get("only1"):
        import gen2
        gen2.add(A, opt, launches, descs)
    A.label("CODE_END")
    for i in range(opt.get("extra", 0)):
        if i == 0:
            kernel_begin(A, "kx_empty_kernel"); A.e("s_endpgm"); descs.append(kernel_desc("kx_empty_kernel", 8, 16))
        launches.insert(0 if opt.get("front") else len(launches), "; @launch kernel=kx_empty_kernel grid=(256,1,1) block=(256,1,1) lds=0")
    for k in range(4):
        for i in range(opt.get("dup%d" % k, 0)):
            j = [n for n, l in enumerate(launches) if "kernel=k%d_" % k in l][0]
            launches.insert(j, launches[j])
    return HEADER + "\n".join(launches) + "\n" + '.amdgcn_target "amdgcn-amd-amdhsa--gfx950"\n' + A.text() + "".join(descs)

if __name__ == "__main__":
    opt = {}
    out = "cdna_kernels/%s.s" % NAME
    for a in sys.argv[1:]:
        if a.startswith("out="): out = a[4:]
        else:
            k, val = a.split("="); opt[k] = int(val)
    open(out, "w").write(build(opt))
    print("wrote", out)
```

```python
import sys
from asmlib import *

NAME = "parallel_sum__sliding_local_dilated__glu_gated_swiglu__prompt"
XNF  = 0x0000000
HF   = 0x0300000
QKV  = 0x1600000
PART = 0x1E00000
PSET = 64 * 36 * 1024
WS_SIZE = PART + 6 * PSET
SZ_X = 2048 * 576 * 2
SZ_WQKV = 576 * 1728 * 2
SZ_WO = 576 * 576 * 2
SZ_W = 576 * 4608 * 2
STF = ["", " sc1", " nt", " sc0 sc1", " sc1 nt"]
LOG2E = 0x3fb8aa3b
NLOG2E = 0xbfb8aa3b

def f2u(x):
    import struct
    return struct.unpack("<I", struct.pack("<f", x))[0]

STAMP = 0x3000000
def stamp_begin(A, opt):
    if not opt.get("stamp"): return
    A.e("s_memrealtime s[92:93]")
    A.e("s_memtime s[94:95]")
def stamp_mid(A, opt, idx=0):
    if not opt.get("stamp"): return
    A.e("s_memtime s[88:89]")
def stamp_end(A, opt, kid, vt, wave_sgpr=None):
    if not opt.get("stamp"): return
    A.e("s_waitcnt vmcnt(0) lgkmcnt(0)")
    A.e("s_memrealtime s[96:97]")
    A.e("s_memtime s[98:99]")
    if opt.get("stamp") == 2:
        A.e("s_load_dwordx2 s[84:85], s[0:1], 64")
        A.e("s_waitcnt lgkmcnt(0)")
        A.e("s_add_u32 s80, s84, %d" % ((3 - kid) * 512)); A.e("s_addc_u32 s81, s85, 0"); A.e("s_and_b32 s81, s81, 0xffff"); A.e("s_mov_b32 s82, 256"); A.e("s_mov_b32 s83, 0x00020000")
        A.e("s_sub_u32 s98, s98, s94"); A.e("s_sub_u32 s88, s88, s94"); A.e("s_not_b32 s92, s92")
        A.e("v_mov_b32 v%d, s92" % vt); A.e("v_mov_b32 v%d, s96" % (vt + 1)); A.e("v_mov_b32 v%d, s98" % (vt + 2)); A.e("v_mov_b32 v%d, s88" % (vt + 3))
        A.e("v_mov_b32 v%d, 0" % (vt + 4))
        A.e("s_mov_b64 exec, 1")
        A.e("s_mul_i32 s86, s2, 37"); A.e("s_and_b32 s86, s86, 0x1f"); A.e("s_cmp_eq_u32 s86, 0"); A.e("s_cselect_b32 s82, s82, 0")
        for q in range(4): A.e("buffer_atomic_umax v%d, v%d, s[80:83], 0 offen offset:%d" % (vt + q, vt + 4, kid * 16 + q * 4))
        return
    A.e("s_load_dwordx2 s[84:85], s[0:1], 72")
    A.e("s_waitcnt lgkmcnt(0)")
    A.e("s_mov_b32 s80, s84"); A.e("s_and_b32 s81, s85, 0xffff"); A.e("s_mov_b32 s82, 0x10000000"); A.e("s_mov_b32 s83, 0x00020000")
    A.e("s_lshl_b32 s86, s2, 8")
    if wave_sgpr is not None:
        A.e("s_lshl_b32 s87, s%d, 5" % wave_sgpr); A.e("s_add_u32 s86, s86, s87")
    A.e("s_add_u32 s86, s86, 0x%x" % (STAMP + kid * 65536))
    A.e("s_sub_u32 s98, s98, s94")
    A.e("s_sub_u32 s88, s88, s94")
    A.e("v_mov_b32 v%d, s92" % vt); A.e("v_mov_b32 v%d, s96" % (vt + 1)); A.e("v_mov_b32 v%d, s98" % (vt + 2)); A.e("v_mov_b32 v%d, s88" % (vt + 3))
    A.e("v_mov_b32 v%d, 0" % (vt + 4))
    A.e("s_mov_b64 exec, 1")
    A.e("buffer_store_dwordx4 v[%d:%d], v%d, s[80:83], s86 offen" % (vt, vt + 3, vt + 4))

def gen_k0(A, opt):
    kernel_begin(A, "k0_ln_kernel")
    A.e("s_cmp_ge_u32 s2, 256")
    A.e("s_cbranch_scc1 K0_END")
    stamp_begin(A, opt); stamp_mid(A, opt)
    A.e("s_load_dwordx2 s[4:5], s[0:1], 0")
    A.e("s_load_dwordx2 s[6:7], s[0:1], 72")
    if opt.get("k0_cpf"):
        A.e("s_getpc_b64 s[40:41]")
        A.label("K0_PC")
        A.e("s_and_b32 s41, s41, 0xffff")
        A.e("s_mov_b32 s42, CODE_END-K0_PC")
        A.e("s_mov_b32 s43, 0x00020000")
        A.e("v_lshlrev_b32 v50, 7, v0")
        A.e("s_mov_b32 s44, 32768")
        A.e("buffer_load_dword v51, v50, s[40:43], 0 offen")
        A.e("buffer_load_dword v52, v50, s[40:43], s44 offen")
    A.e("v_lshrrev_b32 v1, 5, v0")
    A.e("v_and_b32 v2, 31, v0")
    A.e("s_lshl_b32 s3, s2, 3")
    A.e("v_add_u32 v1, s3, v1")
    A.e("v_mul_u32_u24 v3, 1152, v1")
    A.e("v_lshl_add_u32 v3, v2, 4, v3")
    A.e("v_cmp_gt_u32 vcc, 8, v2")
    A.e("s_mov_b64 s[20:21], vcc")
    A.e("s_waitcnt lgkmcnt(0)")
    srd(A, 8, 4, SZ_X)
    srd(A, 12, 6, WS_SIZE)
    for r in range(16, 20): pass
    for i in range(12, 16): pass
    A.e("v_mov_b32 v16, 0"); A.e("v_mov_b32 v17, 0"); A.e("v_mov_b32 v18, 0"); A.e("v_mov_b32 v19, 0")
    A.e("buffer_load_dwordx4 v[8:11], v3, s[8:11], 0 offen")
    A.e("buffer_load_dwordx4 v[12:15], v3, s[8:11], 0 offen offset:512")
    A.e("s_mov_b64 exec, s[20:21]")
    A.e("buffer_load_dwordx4 v[16:19], v3, s[8:11], 0 offen offset:1024")
    A.e("s_mov_b64 exec, -1")
    if opt.get("k0_pf", 1):
        A.e("s_load_dwordx4 s[24:27], s[0:1], 32")
        A.e("s_and_b32 s36, s2, 7"); A.e("s_lshr_b32 s37, s2, 3")
        if opt.get("k1_map", 0) == 0:
            A.e("s_and_b32 s38, s36, 3"); A.e("s_lshl_b32 s38, s38, 3"); A.e("s_lshr_b32 s39, s37, 2"); A.e("s_add_u32 s38, s38, s39")
            A.e("s_and_b32 s39, s37, 3"); nrow = 144
        else:
            A.e("s_lshl_b32 s38, s36, 2"); A.e("s_lshr_b32 s39, s37, 3"); A.e("s_add_u32 s38, s38, s39")
            A.e("s_and_b32 s39, s37, 7"); nrow = 72
        A.e("s_mul_i32 s38, s38, 9"); A.e("s_add_u32 s38, s38, 3"); A.e("s_and_b32 s38, s38, 0xfffffffc"); A.e("s_lshl_b32 s38, s38, 5")
        A.e("s_mul_i32 s39, s39, %d" % (nrow * 9216)); A.e("s_add_u32 s38, s38, s39")
        A.e("v_mul_u32_u24 v20, 9216, v0")
        A.e("v_cmp_gt_u32 vcc, %d, v0" % nrow)
        A.e("v_mov_b32 v21, 0x7fffffff")
        A.e("s_nop 0")
        A.e("v_cndmask_b32 v20, v21, v20, vcc")
        A.e("s_waitcnt lgkmcnt(0)")
        srd(A, 28, 24, SZ_W); srd(A, 32, 26, SZ_W)
        A.e("buffer_load_dword v22, v20, s[28:31], s38 offen")
        A.e("buffer_load_dword v23, v20, s[32:35], s38 offen")
    A.e("v_lshrrev_b32 v4, 5, v1")
    A.e("v_mul_u32_u24 v4, 36, v4")
    A.e("v_lshrrev_b32 v5, 1, v2")
    A.e("v_add_u32 v4, v4, v5")
    A.e("v_lshlrev_b32 v4, 6, v4")
    A.e("v_and_b32 v5, 1, v2")
    A.e("v_lshl_add_u32 v4, v5, 5, v4")
    A.e("v_and_b32 v5, 31, v1")
    A.e("v_add_u32 v4, v4, v5")
    A.e("v_lshlrev_b32 v4, 4, v4")
    A.e("s_mov_b32 s16, 0x%x" % (XNF))
    A.e("s_mov_b32 s17, 0x%x" % (XNF + 16384))
    A.e("s_mov_b32 s18, 0x%x" % (XNF + 32768))
    A.e("s_mov_b32 s19, 0x%x" % f2u(1.0 / 576.0))
    A.e("s_waitcnt vmcnt(%d)" % (2 if opt.get("k0_pf", 1) else 0))
    for i in range(12):
        A.e("v_lshlrev_b32 v%d, 16, v%d" % (24 + 2 * i, 8 + i))
        A.e("v_and_b32 v%d, 0xffff0000, v%d" % (25 + 2 * i, 8 + i))
    def reduce32(r, t):
        A.e("s_nop 1")
        A.e("v_add_f32_dpp v%d, v%d, v%d quad_perm:[1,0,3,2] row_mask:0xf bank_mask:0xf" % (r, r, r))
        A.e("s_nop 1")
        A.e("v_add_f32_dpp v%d, v%d, v%d quad_perm:[2,3,0,1] row_mask:0xf bank_mask:0xf" % (r, r, r))
        A.e("s_nop 1")
        A.e("v_add_f32_dpp v%d, v%d, v%d row_half_mirror row_mask:0xf bank_mask:0xf" % (r, r, r))
        A.e("s_nop 1")
        A.e("v_add_f32_dpp v%d, v%d, v%d row_mirror row_mask:0xf bank_mask:0xf" % (r, r, r))
        A.e("v_mov_b32 v%d, v%d" % (t, r))
        A.e("s_nop 1")
        A.e("v_permlane16_swap_b32 v%d, v%d" % (r, t))
        A.e("s_nop 1")
        A.e("v_add_f32 v%d, v%d, v%d" % (r, r, t))
    A.e("v_add_f32 v6, v24, v25")
    A.e("v_add_f32 v7, v26, v27")
    for i in range(4, 24, 2):
        A.e("v_add_f32 v6, v6, v%d" % (24 + i))
        A.e("v_add_f32 v7, v7, v%d" % (25 + i))
    A.e("v_add_f32 v6, v6, v7")
    reduce32(6, 7)
    A.e("v_mul_f32 v6, s19, v6")
    A.e("v_mov_b32 v20, 0"); A.e("v_mov_b32 v21, 0")
    for i in range(0, 24, 2):
        if i == 16: A.e("s_mov_b64 exec, s[20:21]")
        A.e("v_sub_f32 v48, v%d, v6" % (24 + i))
        A.e("v_sub_f32 v49, v%d, v6" % (25 + i))
        A.e("v_fmac_f32 v20, v48, v48")
        A.e("v_fmac_f32 v21, v49, v49")
    A.e("s_mov_b64 exec, -1")
    A.e("v_add_f32 v20, v20, v21")
    reduce32(20, 21)
    A.e("v_mul_f32 v20, s19, v20")
    def rbf(r):
        A.e("v_cvt_pk_bf16_f32 v%d, v%d, v%d" % (r, r, r))
        A.e("v_and_b32 v%d, 0xffff0000, v%d" % (r, r))
    rbf(6); rbf(20)
    A.e("v_add_f32 v20, 0x%x, v20" % f2u(1e-5))
    rbf(20)
    A.e("v_sqrt_f32 v20, v20")
    A.e("s_nop 0")
    rbf(20)
    A.e("v_rcp_f32 v20, v20")
    for i in range(12):
        a, b = 24 + 2 * i, 25 + 2 * i
        A.e("v_sub_f32 v%d, v%d, v6" % (a, a))
        A.e("v_sub_f32 v%d, v%d, v6" % (b, b))
        A.e("v_cvt_pk_bf16_f32 v48, v%d, v%d" % (a, b))
        A.e("v_lshlrev_b32 v%d, 16, v48" % a)
        A.e("v_and_b32 v%d, 0xffff0000, v48" % b)
        A.e("v_mul_f32 v%d, v%d, v20" % (a, a))
        A.e("v_mul_f32 v%d, v%d, v20" % (b, b))
        A.e("v_cvt_pk_bf16_f32 v%d, v%d, v%d" % (8 + i, a, b))
    A.e("buffer_store_dwordx4 v[8:11], v4, s[12:15], s16 offen")
    A.e("buffer_store_dwordx4 v[12:15], v4, s[12:15], s17 offen")
    A.e("s_mov_b64 exec, s[20:21]")
    A.e("buffer_store_dwordx4 v[16:19], v4, s[12:15], s18 offen")
    stamp_end(A, opt, 0, 24)
    A.label("K0_END")
    A.e("s_endpgm")
    return kernel_desc("k0_ln_kernel", 56, 102 if opt.get("stamp") else 48)

def gen_k1(A, opt):
    D = opt.get("k1_D", 4)
    NB = D + 1
    kernel_begin(A, "k1_gemm1_kernel")
    XF = 0
    ACC = 144
    AB = 208
    VA = 232
    VQ = 236
    VO = 239
    VL16 = 242
    VQS = 243
    T = 244
    assert NB * 4 <= 24
    A.e("s_cmp_ge_u32 s2, 256")
    A.e("s_cbranch_scc1 K1_END")
    stamp_begin(A, opt)
    A.e("s_load_dwordx2 s[4:5], s[0:1], 8")
    A.e("s_load_dwordx4 s[8:11], s[0:1], 32")
    A.e("s_load_dwordx2 s[6:7], s[0:1], 72")
    A.e("v_lshrrev_b32 v%d, 6, v0" % T)
    A.e("v_and_b32 v%d, 63, v0" % (T + 1))
    A.e("v_readfirstlane_b32 s12, v%d" % T)
    L = T + 1
    A.e("s_and_b32 s13, s2, 7")
    A.e("s_lshr_b32 s14, s2, 3")
    if opt.get("k1_map", 0) == 0:
        A.e("s_lshr_b32 s15, s13, 2"); A.e("s_lshl_b32 s15, s15, 2"); A.e("s_and_b32 s32, s14, 3"); A.e("s_add_u32 s15, s15, s32")
        A.e("s_and_b32 s32, s13, 3"); A.e("s_lshl_b32 s32, s32, 3"); A.e("s_lshr_b32 s33, s14, 2"); A.e("s_add_u32 s32, s32, s33")
    else:
        A.e("s_and_b32 s15, s14, 7")
        A.e("s_lshl_b32 s32, s13, 2"); A.e("s_lshr_b32 s33, s14, 3"); A.e("s_add_u32 s32, s32, s33")
    SMT, SG = 15, 32
    A.e("s_lshl_b32 s33, s%d, 3" % SMT); A.e("s_add_u32 s33, s33, s12")
    A.e("v_lshlrev_b32 v%d, 4, v%d" % (VL16, L))
    A.e("s_mul_i32 s34, s%d, 9" % SG)
    A.e("s_add_u32 s35, s34, 3"); A.e("s_and_b32 s35, s35, 0xfffffffc")
    A.e("s_sub_u32 s36, s35, s34")
    A.e("s_cmp_eq_u32 s36, 1"); A.e("s_cselect_b32 s37, 1, 0")
    for t in range(4):
        A.e("s_add_u32 s%d, s35, %d" % (40 + t, t))
    for t in range(4):
        A.e("s_add_u32 s38, s37, %d" % t)
        A.e("s_cmp_ge_u32 s38, s36"); A.e("s_cselect_b32 s39, 4, 0")
        A.e("s_add_u32 s38, s38, s39"); A.e("s_add_u32 s%d, s38, s34" % (44 + t))
    A.e("s_cmp_eq_u32 s36, 1"); A.e("s_cselect_b32 s38, 0, 8"); A.e("s_add_u32 s48, s38, s34")
    A.e("s_and_b32 s38, s12, 1")
    A.e("s_lshl_b32 s39, s38, 1")
    A.e("v_lshrrev_b32 v%d, 3, v%d" % (T + 2, L))
    A.e("v_bfe_u32 v%d, v%d, 1, 2" % (T + 3, L))
    A.e("v_bfe_u32 v%d, v%d, 4, 1" % (T + 4, L))
    A.e("v_or_b32 v%d, s39, v%d" % (T + 5, T + 4))
    A.e("v_xor_b32 v%d, v%d, v%d" % (T + 5, T + 5, T + 3))
    A.e("s_lshr_b32 s39, s12, 1"); A.e("s_lshl_b32 s39, s39, 3")
    A.e("v_add_u32 v%d, s39, v%d" % (T + 6, T + 2))
    A.e("v_mul_u32_u24 v%d, 9216, v%d" % (T + 6, T + 6))
    A.e("v_and_b32 v%d, 1, v%d" % (T + 7, L))
    A.e("v_lshl_add_u32 v%d, v%d, 4, v%d" % (T + 6, T + 7, T + 6))
    A.e("v_add_u32 v%d, s35, v%d" % (VO, T + 5))
    A.e("v_lshl_add_u32 v%d, v%d, 5, v%d" % (VO, VO, T + 6))
    A.e("v_add_u32 v%d, s37, v%d" % (VO + 1, T + 5))
    A.e("v_cmp_le_u32 vcc, s36, v%d" % (VO + 1))
    A.e("v_add_u32 v%d, s34, v%d" % (VO + 1, VO + 1))
    A.e("v_add_u32 v%d, 4, v%d" % (VO + 2, VO + 1))
    A.e("v_cndmask_b32 v%d, v%d, v%d, vcc" % (VO + 1, VO + 1, VO + 2))
    A.e("v_lshl_add_u32 v%d, v%d, 5, v%d" % (VO + 1, VO + 1, T + 6))
    A.e("s_min_u32 s49, s%d, 26" % SG)
    A.e("v_lshlrev_b32 v%d, 1, v%d" % (T + 4, T + 4))
    A.e("v_xor_b32 v%d, v%d, v%d" % (T + 4, T + 4, T + 3))
    A.e("s_lshl_b32 s39, s12, 3")
    A.e("v_add_u32 v%d, s39, v%d" % (T + 2, T + 2))
    A.e("v_mul_u32_u24 v%d, 3456, v%d" % (T + 2, T + 2))
    A.e("v_lshl_add_u32 v%d, v%d, 5, v%d" % (T + 2, T + 4, T + 2))
    A.e("s_lshl_b32 s39, s49, 7")
    A.e("v_add_u32 v%d, s39, v%d" % (T + 2, T + 2))
    A.e("v_lshrrev_b32 v%d, 1, v%d" % (T + 3, L))
    A.e("v_mul_u32_u24 v%d, 9216, v%d" % (T + 3, T + 3))
    A.e("s_lshl_b32 s39, s48, 5")
    A.e("v_add_u32 v%d, s39, v%d" % (T + 3, T + 3))
    A.e("s_cmp_lt_u32 s12, 4")
    A.e("s_cselect_b64 vcc, -1, 0")
    A.e("v_cndmask_b32 v%d, v%d, v%d, vcc" % (VO + 2, T + 3, T + 2))
    A.e("v_lshl_add_u32 v%d, v%d, 4, v%d" % (VO + 2, T + 7, VO + 2))
    A.e("s_mov_b32 s51, %d" % (32 * 9216))
    A.e("s_cselect_b32 s51, %d, s51" % (32 * 3456))
    A.e("s_lshl_b32 s52, s12, 10")
    A.e("s_cmp_eq_u32 s12, 5"); A.e("s_cselect_b32 s53, %d, s52" % (5 * 1024 + 128))
    A.e("s_cmp_ge_u32 s12, 6"); A.e("s_cselect_b32 s53, %d, s53" % (7 * 1024))
    A.e("s_waitcnt lgkmcnt(0)")
    A.e("s_bitcmp1_b32 s12, 0")
    A.e("s_cselect_b64 s[16:17], s[10:11], s[8:9]")
    A.e("s_and_b32 s17, s17, 0xffff")
    A.e("s_mov_b32 s18, 0x%x" % SZ_W); A.e("s_mov_b32 s19, 0x00020000")
    A.e("s_cmp_lt_u32 s12, 4")
    A.e("s_cselect_b64 s[20:21], s[4:5], s[16:17]")
    A.e("s_cselect_b32 s22, 0x%x, s18" % SZ_WQKV)
    A.e("s_and_b32 s21, s21, 0xffff")
    A.e("s_cmp_ge_u32 s12, 6"); A.e("s_cselect_b32 s22, 0, s22")
    A.e("s_mov_b32 s23, 0x00020000")
    srd(A, 24, 6, WS_SIZE)
    srd(A, 28, 6, WS_SIZE)
    A.e("s_cmp_ge_u32 s%d, 27" % SG); A.e("s_cselect_b32 s30, 0, s30")
    A.e("s_mul_i32 s54, s33, %d" % (36 * 1024))
    if XNF: A.e("s_add_u32 s54, s54, 0x%x" % XNF)
    A.e("s_mov_b32 s50, 0")
    state = {"n": 0}
    def dma_issue(S, j):
        p, st = divmod(S, 6)
        ldsoff = st * 24576 + j * 8192
        base = 53 if p == 2 else 52
        def f():
            if S == 6 or S == 12:
                if j == 0: A.e("s_mov_b32 s50, 0")
            state[("iss", S, j)] = 1
            A.e("s_add_u32 m0, s%d, 0x%x" % (base, ldsoff))
            A.e("s_nop 0")
            A.vmem("buffer_load_dwordx4 v%d, s[%d:%d], s50 offen lds" % (VO + p, 20 if p == 2 else 16, 23 if p == 2 else 19), ("dma", S))
            if p == 2: A.e("s_add_u32 s50, s50, s51")
            else: A.e("s_add_u32 s50, s50, %d" % (32 * 9216))
        return f
    def x_issue(ks):
        def f():
            if ks % 4 == 0 and ks > 0: A.e("s_add_u32 s54, s54, 4096")
            A.vmem("buffer_load_dwordx4 %s, v%d, s[24:27], s54 offen offset:%d" % (v(XF + 4 * ks, 4), VL16, (ks % 4) * 1024), ("x", ks))
        return f
    PRE = opt.get("k1_pre", 2)
    early = []
    for S in range(6):
        fs = [x_issue(ks) for ks in range(6 * S, 6 * S + 6)] + [dma_issue(S, j) for j in range(3)]
        if S < PRE:
            for f in fs: f()
        else: early.extend(fs)
    A.e("v_bfe_u32 v%d, v%d, 4, 1" % (T + 2, L))
    A.e("v_bfe_u32 v%d, v%d, 5, 1" % (T + 3, L))
    A.e("v_bfe_u32 v%d, v%d, 2, 2" % (T + 4, L))
    A.e("v_and_b32 v%d, 3, v%d" % (T + 5, L))
    A.e("v_lshlrev_b32 v%d, 3, v%d" % (T + 5, T + 5))
    A.e("v_lshl_add_u32 v%d, v%d, 7, v%d" % (T + 6, T + 4, T + 5))
    A.e("v_bfe_u32 v%d, v%d, 3, 1" % (T + 7, L))
    A.e("v_lshl_or_b32 v%d, v%d, 1, v%d" % (T, T + 2, T + 7))
    A.e("v_lshl_add_u32 v%d, v%d, 11, v%d" % (VQ, T + 3, T + 6))
    A.e("v_lshl_add_u32 v%d, v%d, 10, v%d" % (VQ, T + 2, VQ))
    for t in range(4):
        A.e("v_xor_b32 v%d, %d, v%d" % (VA + t, t, T))
        A.e("v_lshl_add_u32 v%d, v%d, 5, v%d" % (VA + t, VA + t, VQ))
    A.e("v_lshl_or_b32 v%d, v%d, 1, v%d" % (T, T + 7, T + 2))
    A.e("v_lshl_add_u32 v%d, v%d, 10, v%d" % (T + 6, T + 3, T + 6))
    A.e("v_lshl_add_u32 v%d, v%d, 5, v%d" % (VQ + 1, T, T + 6))
    A.e("v_xor_b32 v%d, 2, v%d" % (T, T))
    A.e("v_lshl_add_u32 v%d, v%d, 5, v%d" % (VQ + 2, T, T + 6))
    A.e("v_mul_u32_u24 v%d, 1152, v%d" % (VQ, T + 2))
    A.e("v_lshl_add_u32 v%d, v%d, 8, v%d" % (VQ, T + 3, VQ))
    A.e("v_lshl_add_u32 v%d, v%d, 5, v%d" % (VQ, T + 4, VQ))
    A.e("v_add_u32 v%d, v%d, v%d" % (VQ, T + 5, VQ))
    A.e("v_add_u32 v%d, 4096, v%d" % (VQ, VQ))
    A.e("v_and_b32 v%d, 31, v%d" % (VQS, L))
    A.e("v_lshlrev_b32 v%d, 3, v%d" % (VQS, VQS))
    A.e("v_lshl_add_u32 v%d, v%d, 14, v%d" % (VQS, T + 3, VQS))
    A.e("s_mul_i32 s55, s33, 288")
    for i in range(9):
        A.e("s_add_u32 s%d, s%d, s55" % (40 + i, 40 + i))
        A.e("s_lshl_b32 s%d, s%d, 10" % (40 + i, 40 + i))
        A.e("s_add_u32 s%d, s%d, 0x%x" % (40 + i, 40 + i, HF))
    A.e("s_lshl_b32 s56, s49, 18"); A.e("s_lshl_b32 s57, s33, 8"); A.e("s_add_u32 s56, s56, s57"); A.e("s_add_u32 s56, s56, 0x%x" % QKV)
    A.e("s_mov_b32 s58, 0x%x" % NLOG2E)

    pf = []
    PF0 = opt.get("k1_pf0", 200)
    if opt.get("k1_pf", 1):
        A.e("s_load_dwordx2 s[60:61], s[0:1], 48")
        A.e("s_load_dwordx2 s[62:63], s[0:1], 16")
        A.e("s_and_b32 s59, s13, 3"); A.e("s_mul_i32 s59, s59, %d" % (1152 * 1152))
        A.e("s_lshl_b32 s72, s14, 3"); A.e("s_add_u32 s72, s72, s12")
        A.e("s_mul_i32 s73, s72, %d" % (41 * 128)); A.e("s_add_u32 s59, s59, s73")
        A.e("s_and_b32 s74, s13, 1"); A.e("s_mul_i32 s74, s74, %d" % (288 * 1152)); A.e("s_mul_i32 s73, s72, %d" % (11 * 128)); A.e("s_add_u32 s74, s74, s73")
        A.e("v_lshlrev_b32 v%d, 7, v%d" % (T + 2, L))
        A.e("s_waitcnt lgkmcnt(0)")
        srd(A, 64, 60, SZ_W); srd(A, 68, 62, SZ_WO)
        def pf1():
            A.e("s_mov_b32 exec_hi, 0x1ff")
            A.vmem("buffer_load_dword v%d, v%d, s[64:67], s59 offen" % (T + 3, T + 2), "pf")
            A.e("s_mov_b32 exec_hi, -1")
        def pf2():
            A.e("s_mov_b64 exec, 0x7ff")
            A.vmem("buffer_load_dword v%d, v%d, s[68:71], s74 offen" % (T + 3, T + 2), "pf")
            A.e("s_mov_b64 exec, -1")
        pf = [pf1, pf2]
    seq = []
    groups = []
    for p in range(3):
        nt = 3 if p == 2 else 4
        if p == 0: gl = [[0], [1], [2], [3], [4, 5]]
        else: gl = [[0, 1], [2], [3], [4, 5]]
        for g in gl:
            groups.append((len(seq), [6 * p + st for st in g]))
            for t in range(nt):
                for st in g:
                    for kk6 in range(6):
                        seq.append((p, t, 6 * st + kk6))
    N = len(seq)
    gstart = {g[0]: gi for gi, g in enumerate(groups)}
    fill = [[] for _ in range(N + 40)]
    last = {}; first = {}
    for i, (p, t, ks) in enumerate(seq):
        last[(p, t)] = i
        first.setdefault((p, t), i)
    def ffn_epi(p, t):
        a = ACC + 16 * t
        ops = []
        sreg = 40 + 4 * p + t if p < 2 else 48
        for j in range(8):
            ops.append("v_mul_f32 v%d, v%d, v%d" % (a + 8 + j, a + j, a + 8 + j))
            ops.append("v_mul_f32 v%d, s58, v%d" % (a + j, a + j))
        for j in range(8): ops.append("v_exp_f32 v%d, v%d" % (a + j, a + j))
        for j in range(8): ops.append("v_add_f32 v%d, 1.0, v%d" % (a + j, a + j))
        for j in range(8): ops.append("v_rcp_f32 v%d, v%d" % (a + j, a + j))
        for j in range(8): ops.append("v_mul_f32 v%d, v%d, v%d" % (a + 8 + j, a + j, a + 8 + j))
        for j in range(4): ops.append("v_cvt_pk_bf16_f32 v%d, v%d, v%d" % (a + j, a + 8 + 2 * j, a + 9 + 2 * j))
        ops.append(("vm", "buffer_store_dwordx4 %s, v%d, s[24:27], s%d offen%s" % (v(a, 4), VL16, sreg, STF[opt.get("k1_st", 0)])))
        return ops
    def qkv_epi(t):
        a = ACC + 16 * t
        ops = []
        for j in range(8): ops.append("v_cvt_pk_bf16_f32 v%d, v%d, v%d" % (a + j, a + 2 * j, a + 2 * j + 1))
        for q in range(4):
            ops.append("s_add_u32 s57, s56, 0x%x" % ((8 * (t - 1) + 2 * q) * 16384))
            ops.append(("vm", "buffer_store_dwordx2 %s, v%d, s[28:31], s57 offen%s" % (v(a + 2 * q, 2), VQS, STF[opt.get("k1_st", 0)])))
        return ops
    cur = 0
    RATE = opt.get("k1_nsl", 16)
    tail_ops = []
    for p in range(3):
        for t in range(3 if p == 2 else 4):
            ops = ffn_epi(p, t) if (p < 2 or t == 0) else qkv_epi(t)
            start = max(cur, last[(p, t)] + 4)
            dead = first.get((p + 1, t), None)
            nsl = RATE if p < 2 else (len(ops) + 4) // 5
            for k, op in enumerate(ops):
                fill[start + k * nsl // len(ops)].append(op)
            pos = start + nsl
            cur = pos
            if dead is not None: assert pos - 1 < dead - 1, (p, t, pos, dead)
    awin = {}
    def areg(p, t):
        return (VQ + t) if p == 2 else (VA + t)
    def emit_reads(i):
        p, t, ks = seq[i]
        st, kk6 = divmod(ks, 6)
        ch, kk = divmod(kk6, 2)
        r = areg(p, t)
        win = (st // 2) * 49152
        curw = awin.get(r, 0)
        if win != curw:
            d = win - curw
            if d > 0: A.e("v_add_u32 v%d, 0x%x, v%d" % (r, d, r))
            else: A.e("v_subrev_u32 v%d, 0x%x, v%d" % (r, -d, r))
            awin[r] = win
        base = (st % 2) * 24576 + ch * 8192
        b = AB + 4 * (i % NB)
        for rr in range(2):
            if p < 2: off = base + kk * 4096 + rr * 512
            elif t == 0: off = base + kk * 512 + rr * 128
            else: off = base + kk * 2048 + rr * 512
            if opt.get("k1_noread") and i >= NB: continue
            if opt.get("k1_halfread") and i >= NB and i % 2: continue
            if opt.get("k1_plainread"):
                A.lds("ds_read_b64 %s, v%d offset:%d" % (v(b + 2 * rr, 2), r, off), ("a", i)); continue
            A.lds("ds_read_b64_tr_b16 %s, v%d offset:%d" % (v(b + 2 * rr, 2), r, off), ("a", i))
    pend_dma = []
    def barrier_for(gi):
        stages = groups[gi][1]
        if not opt.get("k1_nodma"):
            for S in stages: assert ("iss", S, 2) in state, ("dma not issued", S)
        A.wait(vm=[("dma", S) for S in stages], lg_all=(gi > 0))
        if opt.get("gstamp") == 1: A.e("s_memtime s[%d:%d]" % (60 + 2 * gi, 61 + 2 * gi))
        if not opt.get("k1_nobar"): A.e("s_barrier")
        if opt.get("gstamp") == 2: A.e("s_memtime s[%d:%d]" % (60 + 2 * gi, 61 + 2 * gi))
        if gi > 0:
            for S in groups[gi - 1][1]:
                if S + 6 < 18 and not opt.get("k1_nodma"):
                    for j in range(3): pend_dma.append(dma_issue(S + 6, j))
    barrier_for(0)
    stamp_mid(A, opt)
    nread = 0
    for i in range(D):
        emit_reads(nread); nread += 1
    for i in range(N):
        p, t, ks = seq[i]
        A.wait(lg=("a", i), vm=("x", ks) if p == 0 else None)
        a = ACC + 16 * t
        c = "0" if first[(p, t)] == i else v(a, 16)
        if opt.get("k1_fake16"):
            for hh in range(2):
                aa = a + 4 * ((2 * i + hh) % 4)
                A.e("v_mfma_f32_16x16x32_bf16 %s, %s, %s, %s" % (v(aa, 4), v(AB + 4 * (i % NB), 4), v(XF + 4 * ((ks + hh) % 36 if p else max(0, ks - hh)), 4), v(aa, 4)))
        elif not opt.get("k1_nomfma"): A.e("v_mfma_f32_32x32x16_bf16 %s, %s, %s, %s" % (v(a, 16), v(AB + 4 * (i % NB), 4), v(XF + 4 * ks, 4), c))
        target = min(N, i + D + 1)
        while nread < target:
            if nread in gstart:
                if nread > i + D - 1 and ("bar", nread) not in state:
                    break
                if ("bar", nread) not in state:
                    barrier_for(gstart[nread]); state[("bar", nread)] = 1
            emit_reads(nread); nread += 1
        for op in fill[i]:
            if isinstance(op, tuple):
                if not opt.get("k1_nost"): A.vmem(op[1], "st")
            elif not opt.get("k1_noepi"): A.e(op)
        if early:
            if i % opt.get("k1_eint", 2) == 0: early.pop(0)()
        elif pend_dma and i % (2 if len(pend_dma) > 6 else 3) == 0:
            pend_dma.pop(0)()
        elif pf and i >= PF0 and i % 4 == 1:
            pf.pop(0)()
    assert not pend_dma
    A.e("s_nop 7"); A.e("s_nop 3")
    for i in range(N, len(fill)):
        for op in fill[i]:
            if isinstance(op, tuple): A.vmem(op[1], "st")
            else: A.e(op)
    if opt.get("gstamp"):
        A.e("s_memtime s[86:87]")
        A.e("s_waitcnt vmcnt(0) lgkmcnt(0)")
        for gi in range(14):
            A.e("s_sub_u32 s%d, s%d, s94" % (60 + 2 * gi, 60 + 2 * gi))
            A.e("v_mov_b32 v%d, s%d" % (gi, 60 + 2 * gi))
        A.e("v_mov_b32 v14, 0"); A.e("v_mov_b32 v15, 0"); A.e("v_mov_b32 v16, 0")
        A.e("s_lshl_b32 s60, s2, 9"); A.e("s_lshl_b32 s61, s12, 6"); A.e("s_add_u32 s60, s60, s61"); A.e("s_add_u32 s60, s60, 0x%x" % (STAMP + 0x80000))
        A.e("s_mov_b32 s26, 0x10000000")
        A.e("s_mov_b64 exec, 1")
        for q in range(4): A.e("buffer_store_dwordx4 v[%d:%d], v16, s[24:27], s60 offen offset:%d" % (4 * q, 4 * q + 3, 16 * q))
        A.e("s_mov_b64 exec, -1")
    stamp_end(A, opt, 1, 0, 12)
    A.label("K1_END")
    A.e("s_endpgm")
    return kernel_desc("k1_gemm1_kernel", 256, 102 if opt.get("stamp") else 80)

def gen_touch(A, opt):
    sh = opt.get("touch")
    kernel_begin(A, "kt_touch_kernel")
    A.e("s_cmp_ge_u32 s2, 256")
    A.e("s_cbranch_scc1 KT_END")
    A.e("s_load_dwordx16 s[4:19], s[0:1], 0")
    A.e("s_load_dwordx2 s[20:21], s[0:1], 72")
    A.e("s_lshr_b32 s3, s2, 3"); A.e("s_lshl_b32 s3, s3, 8")
    A.e("v_add_u32 v1, s3, v0")
    A.e("v_lshlrev_b32 v1, %d, v1" % sh)
    A.e("s_waitcnt lgkmcnt(0)")
    bl = [(4, SZ_X), (6, SZ_WQKV), (8, SZ_WO), (12, SZ_W), (14, SZ_W), (16, SZ_W), (18, SZ_X), (20, WS_SIZE)]
    if opt.get("touch_ws_only"): bl = bl[-2:]
    if opt.get("touch_in_only"): bl = bl[:-2]
    for n, (b, sz) in enumerate(bl):
        srd(A, 24 + 4 * n, b, sz)
        cover = 8192 << sh
        for o in range(0, sz, cover):
            A.e("s_mov_b32 s22, 0x%x" % o)
            A.e("buffer_load_dword v2, v1, s[%d:%d], s22 offen" % (24 + 4 * n, 27 + 4 * n))
    A.label("KT_END")
    A.e("s_endpgm")
    return kernel_desc("kt_touch_kernel", 8, 64)

HEADER = """; Kernarg layout for this problem (80 bytes, ptrs only, base s[0:1]):
"""

def build(opt):
    A = Asm()
    launches = []
    descs = []
    descs.append(gen_k0(A, opt)); launches.append("; @launch kernel=k0_ln_kernel grid=(256,1,1) block=(256,1,1) lds=0")
    descs.append(gen_k1(A, opt)); launches.append("; @launch kernel=k1_gemm1_kernel grid=(256,1,1) block=(512,1,1) lds=147456")
    if not opt.get("only1"):
        import gen2
        gen2.add(A, opt, launches, descs)
    if opt.get("touch"):
        descs.append(gen_touch(A, opt)); launches.insert(0, "; @launch kernel=kt_touch_kernel grid=(256,1,1) block=(256,1,1) lds=0")
    A.label("CODE_END")
    for i in range(opt.get("extra", 0)):
        if i == 0:
            kernel_begin(A, "kx_empty_kernel"); A.e("s_endpgm"); descs.append(kernel_desc("kx_empty_kernel", 8, 16))
        launches.insert(0 if opt.get("front") else len(launches), "; @launch kernel=kx_empty_kernel grid=(256,1,1) block=(256,1,1) lds=0")
    for k in range(4):
        for i in range(opt.get("dup%d" % k, 0)):
            j = [n for n, l in enumerate(launches) if "kernel=k%d_" % k in l][0]
            launches.insert(j, launches[j])
    return HEADER + "\n".join(launches) + "\n" + '.amdgcn_target "amdgcn-amd-amdhsa--gfx950"\n' + A.text() + "".join(descs)

if __name__ == "__main__":
    opt = {}
    out = "cdna_kernels/%s.s" % NAME
    for a in sys.argv[1:]:
        if a.startswith("out="): out = a[4:]
        else:
            k, val = a.split("="); opt[k] = int(val)
    open(out, "w").write(build(opt))
    print("wrote", out)
```

```python
from asmlib import *
import gen as G

def gen_k2(A, opt):
    kernel_begin(A, "k2_gemm2_kernel")
    T = 240
    L = T + 1
    A.e("s_cmp_ge_u32 s2, 256")
    A.e("s_cbranch_scc1 K2_END")
    G.stamp_begin(A, opt)
    A.e("s_load_dwordx2 s[4:5], s[0:1], 48")
    A.e("s_load_dwordx2 s[8:9], s[0:1], 16")
    A.e("s_load_dwordx2 s[6:7], s[0:1], 72")
    A.e("v_lshrrev_b32 v%d, 6, v0" % T)
    A.e("v_and_b32 v%d, 63, v0" % L)
    A.e("v_readfirstlane_b32 s12, v%d" % T)
    A.e("s_and_b32 s13, s2, 7")
    A.e("s_lshr_b32 s14, s2, 3")
    VL16 = 238
    VW = 239
    A.e("v_lshlrev_b32 v%d, 4, v%d" % (VL16, L))
    A.e("v_lshrrev_b32 v%d, 3, v%d" % (T + 2, L))
    A.e("v_bfe_u32 v%d, v%d, 1, 2" % (T + 3, L))
    A.e("v_bfe_u32 v%d, v%d, 4, 1" % (T + 4, L))
    A.e("v_lshlrev_b32 v%d, 1, v%d" % (T + 4, T + 4))
    A.e("v_xor_b32 v%d, v%d, v%d" % (T + 3, T + 3, T + 4))
    A.e("v_mul_u32_u24 v%d, 1152, v%d" % (VW, T + 2))
    A.e("v_lshl_add_u32 v%d, v%d, 5, v%d" % (VW, T + 3, VW))
    A.e("v_and_b32 v%d, 1, v%d" % (T + 4, L))
    A.e("v_lshl_add_u32 v%d, v%d, 4, v%d" % (VW, T + 4, VW))
    VT0 = 236; VT1 = 237
    A.e("v_bfe_u32 v%d, v%d, 4, 1" % (T + 2, L))
    A.e("v_bfe_u32 v%d, v%d, 5, 1" % (T + 3, L))
    A.e("v_bfe_u32 v%d, v%d, 2, 2" % (T + 4, L))
    A.e("v_and_b32 v%d, 3, v%d" % (T + 5, L))
    A.e("v_lshlrev_b32 v%d, 3, v%d" % (T + 5, T + 5))
    A.e("v_lshl_add_u32 v%d, v%d, 7, v%d" % (T + 5, T + 4, T + 5))
    A.e("v_lshl_add_u32 v%d, v%d, 9, v%d" % (T + 5, T + 3, T + 5))
    A.e("v_bfe_u32 v%d, v%d, 3, 1" % (T + 6, L))
    A.e("v_lshl_or_b32 v%d, v%d, 1, v%d" % (T + 6, T + 6, T + 2))
    A.e("v_lshl_add_u32 v%d, v%d, 5, v%d" % (VT0, T + 6, T + 5))
    A.e("v_xor_b32 v%d, 64, v%d" % (VT1, VT0))
    A.e("s_waitcnt lgkmcnt(0)")
    srd(A, 16, 4, G.SZ_W)
    srd(A, 20, 8, G.SZ_WO)
    srd(A, 24, 6, G.WS_SIZE)
    A.e("s_cmp_ge_u32 s14, 24")
    A.e("s_cbranch_scc1 %s" % ("K2_END" if opt.get("k2_noatt") else "K2_ATT"))
    if opt.get("k2_noffn"): A.e("s_branch K2_END")
    A.e("s_and_b32 s15, s13, 3")
    A.e("s_lshr_b32 s32, s13, 2"); A.e("s_lshl_b32 s32, s32, 3"); A.e("s_and_b32 s33, s14, 7"); A.e("s_add_u32 s32, s32, s33")
    A.e("s_lshr_b32 s33, s14, 3")
    A.e("s_cmp_ge_u32 s12, 4")
    A.e("s_cbranch_scc1 K2_FLOAD")
    NST = 18
    SLOT = 40960
    ACC = 0
    FB = 96
    VAa = 140
    VBa = 143
    A.e("s_and_b32 s34, s12, 1"); A.e("s_lshr_b32 s35, s12, 1")
    A.e("s_cmp_eq_u32 s35, 0")
    A.e("s_cselect_b64 vcc, -1, 0")
    A.e("v_cndmask_b32 v%d, v%d, v%d, vcc" % (VAa, VT1, VT0))
    A.e("v_cndmask_b32 v%d, v%d, v%d, vcc" % (VAa + 1, VT0, VT1))
    A.e("v_mov_b32 v%d, v%d" % (VAa + 2, VAa))
    A.e("s_cselect_b32 s36, 0, 8192"); A.e("s_add_u32 s36, s36, 16384")
    A.e("v_add_u32 v%d, s36, v%d" % (VAa, VAa))
    A.e("s_cmp_eq_u32 s35, 0")
    A.e("s_cselect_b32 s36, 0, 16384"); A.e("s_add_u32 s36, s36, 16384")
    A.e("v_add_u32 v%d, s36, v%d" % (VAa + 1, VAa + 1))
    A.e("s_cmp_eq_u32 s35, 0")
    A.e("s_cselect_b32 s36, 0, 8192"); A.e("s_add_u32 s36, s36, %d" % (16384 + 8192))
    A.e("v_add_u32 v%d, s36, v%d" % (VAa + 2, VAa + 2))
    A.e("s_lshl_b32 s36, s34, 13")
    A.e("v_add_u32 v%d, s36, v%d" % (VBa, VL16))
    A.e("s_lshl_b32 s36, s32, 2"); A.e("s_lshl_b32 s37, s34, 1"); A.e("s_add_u32 s36, s36, s37"); A.e("s_mul_i32 s36, s36, 36")
    A.e("s_mul_i32 s37, s33, 12"); A.e("s_add_u32 s36, s36, s37"); A.e("s_mul_i32 s37, s35, 6"); A.e("s_add_u32 s36, s36, s37")
    A.e("s_lshl_b32 s36, s36, 10")
    A.e("s_mul_i32 s37, s15, %d" % G.PSET); A.e("s_add_u32 s36, s36, s37"); A.e("s_add_u32 s36, s36, 0x%x" % G.PART)
    NK = NST * 4
    cur_slot = {"s": 0}
    def reads(n):
        S, ks = divmod(n, 4)
        fb = FB + 20 * (n % 2)
        out = []
        def rb(i):
            return lambda: A.lds("ds_read_b128 %s, v%d offset:%d" % (v(fb + 4 * i, 4), VBa, i * 4096 + ks * 1024), ("b", n, i))
        def ra(t, rr):
            return lambda: A.lds("ds_read_b64_tr_b16 %s, v%d offset:%d" % (v(fb + 8 + 4 * t + 2 * rr, 2), VAa + t, (2 * ks + rr) * 1024), ("a", n, t))
        return [rb(0), ra(0, 0), ra(0, 1), rb(1), ra(1, 0), ra(1, 1), ra(2, 0), ra(2, 1)]
    def advance(S):
        d = (S % 4) * SLOT - ((S - 1) % 4) * SLOT
        for r in (VAa, VAa + 1, VAa + 2, VBa):
            if d > 0: A.e("v_add_u32 v%d, 0x%x, v%d" % (r, d, r))
            else: A.e("v_subrev_u32 v%d, 0x%x, v%d" % (r, -d, r))
    A.e("s_barrier")
    if not opt.get("mid2"): G.stamp_mid(A, opt)
    for f in reads(0): f()
    for n in range(NK):
        fb = FB + 20 * (n % 2)
        nxt = reads(n + 1) if n + 1 < NK else []
        newstage = (n + 1) % 4 == 0 and n + 1 < NK
        order = [(0, 0), (1, 0), (0, 1), (1, 1), (0, 2), (1, 2)]
        if newstage: sched = [0, 0, 3, 2, 2, 1]
        else: sched = [2, 2, 1, 1, 1, 1]
        for m, (i, t) in enumerate(order):
            A.wait(lg=[("b", n, i), ("a", n, t)])
            a = ACC + (i * 3 + t) * 16
            A.e("v_mfma_f32_32x32x16_bf16 %s, %s, %s, %s" % (v(a, 16), v(fb + 8 + 4 * t, 4), v(fb + 4 * i, 4), "0" if n == 0 else v(a, 16)))
            if newstage and m == 1:
                advance((n + 1) // 4)
                A.wait(lg_all=True)
                A.e("s_barrier")
            for _ in range(sched[m]):
                if nxt: nxt.pop(0)()
        assert not nxt
    if opt.get("mid2"): G.stamp_mid(A, opt)
    A.e("s_nop 7"); A.e("s_nop 3")
    for t in range(3):
        for i in range(2):
            a = ACC + (i * 3 + t) * 16
            for j in range(8): A.e("v_cvt_pk_bf16_f32 v%d, v%d, v%d" % (a + j, a + 2 * j, a + 2 * j + 1))
            A.e("s_add_u32 s37, s36, %d" % ((i * 36 + 2 * t) * 1024))
            A.vmem("buffer_store_dwordx4 %s, v%d, s[24:27], s37 offen%s" % (v(a, 4), VL16, G.STF[opt.get("k2_st", 0)]))
            A.vmem("buffer_store_dwordx4 %s, v%d, s[24:27], s37 offen offset:1024%s" % (v(a + 4, 4), VL16, G.STF[opt.get("k2_st", 0)]))
    G.stamp_end(A, opt, 2, 100, 12)
    A.e("s_endpgm")
    A.label("K2_FLOAD")
    A.reset()
    A.e("s_sub_u32 s34, s12, 4")
    A.e("s_lshl_b32 s35, s32, 2"); A.e("s_add_u32 s35, s35, s34"); A.e("s_mul_i32 s35, s35, 288"); A.e("s_mul_i32 s36, s15, 72"); A.e("s_add_u32 s35, s35, s36")
    A.e("s_lshl_b32 s35, s35, 10"); A.e("s_add_u32 s35, s35, 0x%x" % G.HF)
    A.e("s_lshl_b32 s36, s34, 12")
    A.e("s_mul_i32 s37, s15, 1152"); A.e("s_lshl_b32 s38, s34, 4"); A.e("s_add_u32 s37, s37, s38"); A.e("s_mul_i32 s37, s37, 1152")
    A.e("s_mul_i32 s38, s33, 384"); A.e("s_add_u32 s37, s37, s38")
    A.e("s_lshl_b32 s38, s34, 11"); A.e("s_add_u32 s38, s38, 16384")
    def issue(S):
        if opt.get("k2_nodma") and S >= 4: return
        sl = (S % 4) * SLOT
        A.e("s_add_u32 m0, s36, 0x%x" % sl)
        A.e("s_nop 0")
        for k in range(4):
            if opt.get("k2_noh") and S >= 4: continue
            A.vmem("buffer_load_dwordx4 v%d, s[24:27], s35 offen offset:%d lds" % (VL16, k * 1024), ("d", S))
        A.e("s_add_u32 s35, s35, 4096")
        for e in range(2):
            for j in range(3):
                if opt.get("k2_now") and S >= 4: continue
                A.e("s_add_u32 m0, s38, 0x%x" % (sl + j * 8192 + e * 1024))
                A.e("s_add_u32 s39, s37, %d" % (e * 8 * 1152 + j * 128))
                A.vmem("buffer_load_dwordx4 v%d, s[16:19], s39 offen lds" % VW, ("d", S))
        A.e("s_add_u32 s37, s37, %d" % (64 * 1152))
    issue(0); issue(1)
    nxt = 2
    for S in range(NST):
        A.wait(vm=("d", S))
        A.e("s_barrier")
        lim = min(NST - 1, S + 3)
        while nxt <= lim:
            issue(nxt); nxt += 1
    A.e("s_endpgm")

    A.label("K2_ATT")
    A.reset()
    A.e("s_and_b32 s15, s13, 1")
    A.e("s_lshr_b32 s32, s13, 1"); A.e("s_lshl_b32 s32, s32, 3"); A.e("s_add_u32 s32, s32, s14"); A.e("s_sub_u32 s32, s32, 24")
    KB = 73728; VB = KB + 72 * 624
    A.e("s_mul_i32 s33, s15, 72"); A.e("s_mul_i32 s34, s12, 9"); A.e("s_add_u32 s33, s33, s34")
    A.e("s_lshl_b32 s33, s33, 14"); A.e("s_lshl_b32 s35, s32, 9"); A.e("s_add_u32 s33, s33, s35"); A.e("s_add_u32 s33, s33, 0x%x" % G.QKV)
    A.e("s_mul_i32 s36, s34, 624")
    Q = 0
    KV = 20
    LG = 60
    O = 80
    P = 120
    VL8 = 156; VKA = 157; VROW = 158
    A.e("v_lshlrev_b32 v%d, 3, v%d" % (VL8, L))
    A.e("s_mov_b32 exec_lo, -1"); A.e("s_mov_b32 exec_hi, 0x7f")
    for which in range(2):
        for c in range(9):
            A.e("s_add_u32 m0, s36, %d" % ((KB if which == 0 else VB) + c * 624))
            A.e("s_add_u32 s37, s33, 0x%x" % ((144 * (which + 1) + c) * 16384 - 112))
            A.vmem("buffer_load_dwordx4 v%d, s[24:27], s37 offen lds" % VL16, "k" if which == 0 else "v")
        if which == 0:
            A.e("s_mov_b64 exec, -1")
            for c in range(9):
                A.e("s_add_u32 s37, s33, 0x%x" % (c * 16384))
                A.vmem("buffer_load_dwordx2 %s, v%d, s[24:27], s37 offen" % (v(Q + 2 * c, 2), VL8), "q")
            A.e("s_mov_b32 exec_hi, 0x7f")
    A.e("s_mov_b64 exec, -1")
    A.e("s_mul_i32 s38, s15, 288"); A.e("s_lshl_b32 s39, s12, 3"); A.e("s_add_u32 s38, s38, s39"); A.e("s_mul_i32 s38, s38, 1152")
    A.e("s_lshr_b32 s39, s12, 2"); A.e("s_mul_i32 s39, s39, 36864"); A.e("s_and_b32 s40, s12, 3"); A.e("s_lshl_b32 s40, s40, 10"); A.e("s_add_u32 s39, s39, s40")
    for j in range(9):
        A.e("s_add_u32 m0, s39, %d" % (j * 4096))
        A.e("s_add_u32 s37, s38, %d" % (j * 128))
        A.vmem("buffer_load_dwordx4 v%d, s[20:23], s37 offen lds" % VW, "wo01")
    A.e("v_add_u32 v%d, s36, v%d" % (VKA, VL8))
    A.e("v_add_u32 v%d, %d, v%d" % (VKA, KB, VKA))
    A.e("s_lshl_b32 s41, s32, 6")
    A.e("v_add_u32 v%d, s41, v%d" % (VROW, L))
    A.e("s_mov_b32 s42, 0x%x" % G.f2u(18 ** -0.5 * 1.4426950408889634))
    A.e("v_mov_b32 v%d, 0x%x" % (T + 2, G.f2u(-1e9)))
    def rd(which, w_):
        b = KV + 18 * (w_ % 2)
        for c in range(9):
            A.lds("ds_read_b64 %s, v%d offset:%d" % (v(b + 2 * c, 2), VKA, (0 if which == 0 else VB - KB) + c * 624 + (14 - 2 * w_) * 8), (which, w_))
    A.wait(vm="q")
    G.stamp_mid(A, opt)
    rd(0, 0)
    for w_ in range(8):
        b = KV + 18 * (w_ % 2)
        A.wait(lg=(0, w_))
        if w_ < 7: rd(0, w_ + 1)
        for d in range(9):
            for hd in range(2):
                r = hd * 9 + d
                lg = LG + hd * 8 + w_
                A.e("v_dot2_f32_bf16 v%d, v%d, v%d, %s" % (lg, Q + r, b + r, "0" if d == 0 else "v%d" % lg))
    A.wait(vm="v")
    rd(1, 0)
    A.e("s_nop 1")
    for w_ in range(1, 8):
        A.e("v_cmp_le_u32 vcc, %d, v%d" % (2 * w_, VROW))
        A.e("s_nop 1")
        for hd in range(2):
            lg = LG + hd * 8 + w_
            A.e("v_cndmask_b32 v%d, v%d, v%d, vcc" % (lg, T + 2, lg))
    for hd in range(2):
        lg = LG + hd * 8; m = T + 3 + hd
        A.e("v_max3_f32 v%d, v%d, v%d, v%d" % (m, lg, lg + 1, lg + 2))
        A.e("v_max3_f32 v%d, v%d, v%d, v%d" % (m, m, lg + 3, lg + 4))
        A.e("v_max3_f32 v%d, v%d, v%d, v%d" % (m, m, lg + 5, lg + 6))
        A.e("v_max_f32 v%d, v%d, v%d" % (m, m, lg + 7))
    for hd in range(2):
        for w_ in range(8):
            lg = LG + hd * 8 + w_
            A.e("v_sub_f32 v%d, v%d, v%d" % (lg, lg, T + 3 + hd))
    for k in range(16): A.e("v_mul_f32 v%d, s42, v%d" % (LG + k, LG + k))
    for k in range(16): A.e("v_exp_f32 v%d, v%d" % (LG + k, LG + k))
    for hd in range(2):
        lg = LG + hd * 8; sm = T + 5 + hd
        A.e("v_add_f32 v%d, v%d, v%d" % (sm, lg, lg + 1))
    for w_ in range(2, 8):
        for hd in range(2):
            A.e("v_add_f32 v%d, v%d, v%d" % (T + 5 + hd, T + 5 + hd, LG + hd * 8 + w_))
    A.e("v_rcp_f32 v%d, v%d" % (T + 5, T + 5)); A.e("v_rcp_f32 v%d, v%d" % (T + 6, T + 6))
    A.e("v_mov_b32 v%d, 0" % (T + 7))
    for k in range(16): A.e("v_mul_f32 v%d, v%d, v%d" % (LG + k, LG + k, T + 5 + k // 8))
    for k in range(16):
        A.e("v_cvt_pk_bf16_f32 v%d, v%d, v%d" % (P + 2 * k, LG + k, T + 7))
        A.e("v_cvt_pk_bf16_f32 v%d, v%d, v%d" % (P + 2 * k + 1, T + 7, LG + k))
    for w_ in range(8):
        b = KV + 18 * (w_ % 2)
        A.wait(lg=(1, w_))
        if w_ < 7: rd(1, w_ + 1)
        for r in range(18):
            hd = r // 9
            for e in range(2):
                o = O + 2 * r + e
                A.e("v_dot2_f32_bf16 v%d, v%d, v%d, %s" % (o, b + r, P + 2 * (hd * 8 + w_) + e, "0" if w_ == 0 else "v%d" % o))
    A.e("s_nop 2")
    for r in range(18): A.e("v_cvt_pk_bf16_f32 v%d, v%d, v%d" % (Q + r, O + 2 * r, O + 2 * r + 1))
    for c in range(9):
        A.lds("ds_write_b64 v%d, %s offset:%d" % (VKA, v(Q + 2 * c, 2), c * 624), "ow")
    A.wait(vm_all=True, lg_all=True)
    A.e("s_barrier")
    A.e("s_cmp_ge_u32 s12, 4")
    A.e("s_cbranch_scc1 K2_ALOAD")
    slots = [0, 36864, VB]
    ACC = 0
    BF = 144
    AF = 152
    D = 4; NB = 5
    VA0 = 176; VA1 = 177; VBo = 178
    A.e("s_and_b32 s34, s12, 1"); A.e("s_lshr_b32 s35, s12, 1")
    A.e("s_cmp_eq_u32 s35, 0")
    A.e("s_cselect_b64 vcc, -1, 0")
    A.e("v_cndmask_b32 v%d, v%d, v%d, vcc" % (VA0, VT1, VT0))
    A.e("v_cndmask_b32 v%d, v%d, v%d, vcc" % (VA1, VT0, VT1))
    A.e("s_cselect_b32 s37, 0, %d" % (4 * 4096)); A.e("v_add_u32 v%d, s37, v%d" % (VA0, VA0))
    A.e("s_cselect_b32 s37, 0, %d" % (5 * 4096)); A.e("v_add_u32 v%d, s37, v%d" % (VA1, VA1))
    A.e("v_and_b32 v%d, 31, v%d" % (VBo, L)); A.e("v_lshlrev_b32 v%d, 3, v%d" % (VBo, VBo))
    A.e("v_bfe_u32 v%d, v%d, 5, 1" % (T + 3, L)); A.e("v_mul_u32_u24 v%d, 624, v%d" % (T + 3, T + 3)); A.e("v_add_u32 v%d, v%d, v%d" % (VBo, T + 3, VBo))
    A.e("s_lshl_b32 s37, s34, 8"); A.e("s_add_u32 s37, s37, %d" % KB); A.e("v_add_u32 v%d, s37, v%d" % (VBo, VBo))
    A.e("s_lshl_b32 s36, s32, 1"); A.e("s_add_u32 s36, s36, s34"); A.e("s_mul_i32 s36, s36, 36"); A.e("s_mul_i32 s37, s35, 18"); A.e("s_add_u32 s36, s36, s37")
    A.e("s_lshl_b32 s36, s36, 10"); A.e("s_mul_i32 s37, s15, %d" % G.PSET); A.e("s_add_u32 s36, s36, s37"); A.e("s_add_u32 s36, s36, 0x%x" % (G.PART + 4 * G.PSET))
    seq = [(ks, t) for ks in range(18) for t in range(9)]
    N = len(seq)
    cur = {"base": 0}
    done_bar = set()
    def ereads(i):
        ks, t = seq[i]
        S, kk = divmod(ks, 2)
        if t == 0:
            if slots[S % 3] != cur["base"]:
                d = slots[S % 3] - cur["base"]
                for r in (VA0, VA1):
                    if d > 0: A.e("v_add_u32 v%d, 0x%x, v%d" % (r, d, r))
                    else: A.e("v_subrev_u32 v%d, 0x%x, v%d" % (r, -d, r))
                cur["base"] = slots[S % 3]
            for rr in range(2):
                A.lds("ds_read_b64 %s, v%d offset:%d" % (v(BF + 4 * (ks % 2) + 2 * rr, 2), VBo, (4 * ks + 2 * rr) * 624), ("a", i))
        for rr in range(2):
            A.lds("ds_read_b64_tr_b16 %s, v%d offset:%d" % (v(AF + 4 * (i % NB) + 2 * rr, 2), VA1 if t % 2 else VA0, (t // 2) * 4096 + (2 * kk + rr) * 1024), ("a", i))
    nread = 0
    for i in range(D): ereads(nread); nread += 1
    for i in range(N):
        ks, t = seq[i]
        A.wait(lg=("a", i))
        a = ACC + 16 * t
        A.e("v_mfma_f32_32x32x16_bf16 %s, %s, %s, %s" % (v(a, 16), v(AF + 4 * (i % NB), 4), v(BF + 4 * (ks % 2), 4), "0" if ks == 0 else v(a, 16)))
        target = min(N, i + D + 1)
        while nread < target:
            if nread % 18 == 0 and nread not in done_bar:
                if nread > i + D - 1: break
                A.wait(lg_all=True); A.e("s_barrier"); done_bar.add(nread)
            ereads(nread); nread += 1
    A.e("s_nop 7"); A.e("s_nop 3")
    for t in range(9):
        a = ACC + 16 * t
        for j in range(8): A.e("v_cvt_pk_bf16_f32 v%d, v%d, v%d" % (a + j, a + 2 * j, a + 2 * j + 1))
        A.e("s_add_u32 s37, s36, %d" % (2 * t * 1024))
        A.vmem("buffer_store_dwordx4 %s, v%d, s[24:27], s37 offen%s" % (v(a, 4), VL16, G.STF[opt.get("k2_st", 0)]))
        A.vmem("buffer_store_dwordx4 %s, v%d, s[24:27], s37 offen offset:1024%s" % (v(a + 4, 4), VL16, G.STF[opt.get("k2_st", 0)]))
    G.stamp_end(A, opt, 2, 180, 12)
    A.e("s_endpgm")
    A.label("K2_ALOAD")
    A.reset()
    def aissue(S):
        for j in range(9):
            A.e("s_add_u32 m0, s40, %d" % (slots[S % 3] + j * 4096))
            A.e("s_add_u32 s37, s38, %d" % ((S - 1) * 32 * 1152 + j * 128))
            A.vmem("buffer_load_dwordx4 v%d, s[20:23], s37 offen lds" % VW, ("d", S))
    aissue(2)
    for S in range(1, 9):
        A.wait(vm=("d", S))
        A.e("s_barrier")
        if S + 2 <= 8: aissue(S + 2)
    A.label("K2_END")
    A.e("s_endpgm")
    return kernel_desc("k2_gemm2_kernel", 256, 102 if opt.get("stamp") else 64)

def gen_k3(A, opt):
    kernel_begin(A, "k3_reduce_kernel")
    A.e("s_cmp_ge_u32 s2, 256")
    A.e("s_cbranch_scc1 K3_END")
    G.stamp_begin(A, opt); G.stamp_mid(A, opt)
    A.e("s_load_dwordx2 s[4:5], s[0:1], 0")
    A.e("s_load_dwordx2 s[8:9], s[0:1], 56")
    A.e("s_load_dwordx2 s[6:7], s[0:1], 72")
    A.e("v_lshrrev_b32 v1, 6, v0")
    A.e("v_and_b32 v2, 63, v0")
    A.e("v_readfirstlane_b32 s12, v1")
    A.e("s_mul_i32 s13, s2, 9"); A.e("s_add_u32 s13, s13, s12"); A.e("s_lshl_b32 s13, s13, 10"); A.e("s_add_u32 s13, s13, 0x%x" % G.PART)
    A.e("v_lshlrev_b32 v3, 4, v2")
    A.e("s_lshr_b32 s14, s2, 2"); A.e("s_mul_i32 s14, s14, %d" % (32 * 1152))
    A.e("s_and_b32 s15, s2, 3"); A.e("s_mul_i32 s15, s15, 9"); A.e("s_add_u32 s15, s15, s12"); A.e("s_lshl_b32 s15, s15, 5"); A.e("s_add_u32 s14, s14, s15")
    A.e("v_and_b32 v4, 31, v2"); A.e("v_mul_u32_u24 v4, 1152, v4")
    A.e("v_lshrrev_b32 v5, 5, v2"); A.e("v_lshl_add_u32 v4, v5, 4, v4")
    A.e("s_waitcnt lgkmcnt(0)")
    srd(A, 16, 4, G.SZ_X); srd(A, 20, 8, G.SZ_X); srd(A, 24, 6, G.WS_SIZE)
    for k in range(6):
        A.vmem("buffer_load_dwordx4 %s, v3, s[24:27], s13 offen" % v(8 + 4 * k, 4), k)
        if k < 5: A.e("s_add_u32 s13, s13, %d" % G.PSET)
    A.vmem("buffer_load_dwordx4 v[32:35], v4, s[16:19], s14 offen", "x")
    for k in range(6):
        A.wait(vm=k)
        for j in range(4):
            r = 8 + 4 * k + j
            if k == 0:
                A.e("v_lshlrev_b32 v%d, 16, v%d" % (40 + 2 * j, r)); A.e("v_and_b32 v%d, 0xffff0000, v%d" % (41 + 2 * j, r))
            else:
                A.e("v_lshlrev_b32 v36, 16, v%d" % r); A.e("v_and_b32 v37, 0xffff0000, v%d" % r)
                A.e("v_add_f32 v%d, v%d, v36" % (40 + 2 * j, 40 + 2 * j)); A.e("v_add_f32 v%d, v%d, v37" % (41 + 2 * j, 41 + 2 * j))
    A.e("s_nop 1")
    for j in range(4): A.e("v_permlane32_swap_b32 v%d, v%d" % (40 + j, 44 + j))
    A.wait(vm="x")
    for j in range(4):
        A.e("v_lshlrev_b32 v36, 16, v%d" % (32 + j)); A.e("v_and_b32 v37, 0xffff0000, v%d" % (32 + j))
        A.e("v_add_f32 v%d, v%d, v36" % (40 + 2 * j, 40 + 2 * j)); A.e("v_add_f32 v%d, v%d, v37" % (41 + 2 * j, 41 + 2 * j))
    for j in range(4): A.e("v_cvt_pk_bf16_f32 v%d, v%d, v%d" % (8 + j, 40 + 2 * j, 41 + 2 * j))
    A.e("buffer_store_dwordx4 v[8:11], v4, s[20:23], s14 offen")
    if opt.get("stamp"): A.e("s_min_u32 s12, s12, 7")
    G.stamp_end(A, opt, 3, 12, 12)
    A.label("K3_END")
    A.e("s_endpgm")
    return kernel_desc("k3_reduce_kernel", 48, 102 if opt.get("stamp") else 32)

def add(A, opt, launches, descs):
    descs.append(gen_k2(A, opt)); launches.append("; @launch kernel=k2_gemm2_kernel grid=(256,1,1) block=(512,1,1) lds=163840")
    descs.append(gen_k3(A, opt)); launches.append("; @launch kernel=k3_reduce_kernel grid=(256,1,1) block=(576,1,1) lds=0")
```

```python
import sys
from asmlib import *

NAME = "parallel_sum__sliding_local_dilated__glu_gated_swiglu__prompt"
XNF  = 0x0000000
HF   = 0x0300000
QKV  = 0x1600000
PART = 0x1E00000
PSET = 64 * 36 * 1024
WS_SIZE = PART + 6 * PSET
SZ_X = 2048 * 576 * 2
SZ_WQKV = 576 * 1728 * 2
SZ_WO = 576 * 576 * 2
SZ_W = 576 * 4608 * 2
STF = ["", " sc1", " nt", " sc0 sc1", " sc1 nt"]
LOG2E = 0x3fb8aa3b
NLOG2E = 0xbfb8aa3b

def f2u(x):
    import struct
    return struct.unpack("<I", struct.pack("<f", x))[0]

STAMP = 0x3000000
def stamp_begin(A, opt):
    if not opt.get("stamp"): return
    A.e("s_memrealtime s[92:93]")
    A.e("s_memtime s[94:95]")
def stamp_mid(A, opt, idx=0):
    if not opt.get("stamp"): return
    A.e("s_memtime s[88:89]")
def stamp_end(A, opt, kid, vt, wave_sgpr=None):
    if not opt.get("stamp"): return
    A.e("s_waitcnt vmcnt(0) lgkmcnt(0)")
    A.e("s_memrealtime s[96:97]")
    A.e("s_memtime s[98:99]")
    if opt.get("stamp") == 2:
        A.e("s_load_dwordx2 s[84:85], s[0:1], 64")
        A.e("s_waitcnt lgkmcnt(0)")
        A.e("s_add_u32 s80, s84, %d" % ((3 - kid) * 512)); A.e("s_addc_u32 s81, s85, 0"); A.e("s_and_b32 s81, s81, 0xffff"); A.e("s_mov_b32 s82, 256"); A.e("s_mov_b32 s83, 0x00020000")
        A.e("s_sub_u32 s98, s98, s94"); A.e("s_sub_u32 s88, s88, s94"); A.e("s_not_b32 s92, s92")
        A.e("v_mov_b32 v%d, s92" % vt); A.e("v_mov_b32 v%d, s96" % (vt + 1)); A.e("v_mov_b32 v%d, s98" % (vt + 2)); A.e("v_mov_b32 v%d, s88" % (vt + 3))
        A.e("v_mov_b32 v%d, 0" % (vt + 4))
        A.e("s_mov_b64 exec, 1")
        A.e("s_mul_i32 s86, s2, 37"); A.e("s_and_b32 s86, s86, 0x1f"); A.e("s_cmp_eq_u32 s86, 0"); A.e("s_cselect_b32 s82, s82, 0")
        for q in range(4): A.e("buffer_atomic_umax v%d, v%d, s[80:83], 0 offen offset:%d" % (vt + q, vt + 4, kid * 16 + q * 4))
        return
    A.e("s_load_dwordx2 s[84:85], s[0:1], 72")
    A.e("s_waitcnt lgkmcnt(0)")
    A.e("s_mov_b32 s80, s84"); A.e("s_and_b32 s81, s85, 0xffff"); A.e("s_mov_b32 s82, 0x10000000"); A.e("s_mov_b32 s83, 0x00020000")
    A.e("s_lshl_b32 s86, s2, 8")
    if wave_sgpr is not None:
        A.e("s_lshl_b32 s87, s%d, 5" % wave_sgpr); A.e("s_add_u32 s86, s86, s87")
    A.e("s_add_u32 s86, s86, 0x%x" % (STAMP + kid * 65536))
    A.e("s_sub_u32 s98, s98, s94")
    A.e("s_sub_u32 s88, s88, s94")
    A.e("v_mov_b32 v%d, s92" % vt); A.e("v_mov_b32 v%d, s96" % (vt + 1)); A.e("v_mov_b32 v%d, s98" % (vt + 2)); A.e("v_mov_b32 v%d, s88" % (vt + 3))
    A.e("v_mov_b32 v%d, 0" % (vt + 4))
    A.e("s_mov_b64 exec, 1")
    A.e("buffer_store_dwordx4 v[%d:%d], v%d, s[80:83], s86 offen" % (vt, vt + 3, vt + 4))

def gen_k0(A, opt):
    kernel_begin(A, "k0_ln_kernel")
    A.e("s_cmp_ge_u32 s2, 256")
    A.e("s_cbranch_scc1 K0_END")
    stamp_begin(A, opt); stamp_mid(A, opt)
    A.e("s_load_dwordx2 s[4:5], s[0:1], 0")
    A.e("s_load_dwordx2 s[6:7], s[0:1], 72")
    if opt.get("k0_cpf"):
        A.e("s_getpc_b64 s[40:41]")
        A.label("K0_PC")
        A.e("s_and_b32 s41, s41, 0xffff")
        A.e("s_mov_b32 s42, CODE_END-K0_PC")
        A.e("s_mov_b32 s43, 0x00020000")
        A.e("v_lshlrev_b32 v50, 7, v0")
        A.e("s_mov_b32 s44, 32768")
        A.e("buffer_load_dword v51, v50, s[40:43], 0 offen")
        A.e("buffer_load_dword v52, v50, s[40:43], s44 offen")
    A.e("v_lshrrev_b32 v1, 5, v0")
    A.e("v_and_b32 v2, 31, v0")
    A.e("s_lshl_b32 s3, s2, 3")
    A.e("v_add_u32 v1, s3, v1")
    A.e("v_mul_u32_u24 v3, 1152, v1")
    A.e("v_lshl_add_u32 v3, v2, 4, v3")
    A.e("v_cmp_gt_u32 vcc, 8, v2")
    A.e("s_mov_b64 s[20:21], vcc")
    A.e("s_waitcnt lgkmcnt(0)")
    srd(A, 8, 4, SZ_X)
    srd(A, 12, 6, WS_SIZE)
    for r in range(16, 20): pass
    for i in range(12, 16): pass
    A.e("v_mov_b32 v16, 0"); A.e("v_mov_b32 v17, 0"); A.e("v_mov_b32 v18, 0"); A.e("v_mov_b32 v19, 0")
    A.e("buffer_load_dwordx4 v[8:11], v3, s[8:11], 0 offen")
    A.e("buffer_load_dwordx4 v[12:15], v3, s[8:11], 0 offen offset:512")
    A.e("s_mov_b64 exec, s[20:21]")
    A.e("buffer_load_dwordx4 v[16:19], v3, s[8:11], 0 offen offset:1024")
    A.e("s_mov_b64 exec, -1")
    if opt.get("k0_pf", 1):
        A.e("s_load_dwordx4 s[24:27], s[0:1], 32")
        A.e("s_and_b32 s36, s2, 7"); A.e("s_lshr_b32 s37, s2, 3")
        if opt.get("k1_map", 0) == 0:
            A.e("s_and_b32 s38, s36, 3"); A.e("s_lshl_b32 s38, s38, 3"); A.e("s_lshr_b32 s39, s37, 2"); A.e("s_add_u32 s38, s38, s39")
            A.e("s_and_b32 s39, s37, 3"); nrow = 144
        else:
            A.e("s_lshl_b32 s38, s36, 2"); A.e("s_lshr_b32 s39, s37, 3"); A.e("s_add_u32 s38, s38, s39")
            A.e("s_and_b32 s39, s37, 7"); nrow = 72
        A.e("s_mul_i32 s38, s38, 9"); A.e("s_add_u32 s38, s38, 3"); A.e("s_and_b32 s38, s38, 0xfffffffc"); A.e("s_lshl_b32 s38, s38, 5")
        A.e("s_mul_i32 s39, s39, %d" % (nrow * 9216)); A.e("s_add_u32 s38, s38, s39")
        A.e("v_mul_u32_u24 v20, 9216, v0")
        A.e("v_cmp_gt_u32 vcc, %d, v0" % nrow)
        A.e("v_mov_b32 v21, 0x7fffffff")
        A.e("s_nop 0")
        A.e("v_cndmask_b32 v20, v21, v20, vcc")
        A.e("s_waitcnt lgkmcnt(0)")
        srd(A, 28, 24, SZ_W); srd(A, 32, 26, SZ_W)
        A.e("buffer_load_dword v22, v20, s[28:31], s38 offen")
        A.e("buffer_load_dword v23, v20, s[32:35], s38 offen")
    A.e("v_lshrrev_b32 v4, 5, v1")
    A.e("v_mul_u32_u24 v4, 36, v4")
    A.e("v_lshrrev_b32 v5, 1, v2")
    A.e("v_add_u32 v4, v4, v5")
    A.e("v_lshlrev_b32 v4, 6, v4")
    A.e("v_and_b32 v5, 1, v2")
    A.e("v_lshl_add_u32 v4, v5, 5, v4")
    A.e("v_and_b32 v5, 31, v1")
    A.e("v_add_u32 v4, v4, v5")
    A.e("v_lshlrev_b32 v4, 4, v4")
    A.e("s_mov_b32 s16, 0x%x" % (XNF))
    A.e("s_mov_b32 s17, 0x%x" % (XNF + 16384))
    A.e("s_mov_b32 s18, 0x%x" % (XNF + 32768))
    A.e("s_mov_b32 s19, 0x%x" % f2u(1.0 / 576.0))
    A.e("s_waitcnt vmcnt(%d)" % (2 if opt.get("k0_pf", 1) else 0))
    for i in range(12):
        A.e("v_lshlrev_b32 v%d, 16, v%d" % (24 + 2 * i, 8 + i))
        A.e("v_and_b32 v%d, 0xffff0000, v%d" % (25 + 2 * i, 8 + i))
    def reduce32(r, t):
        A.e("s_nop 1")
        A.e("v_add_f32_dpp v%d, v%d, v%d quad_perm:[1,0,3,2] row_mask:0xf bank_mask:0xf" % (r, r, r))
        A.e("s_nop 1")
        A.e("v_add_f32_dpp v%d, v%d, v%d quad_perm:[2,3,0,1] row_mask:0xf bank_mask:0xf" % (r, r, r))
        A.e("s_nop 1")
        A.e("v_add_f32_dpp v%d, v%d, v%d row_half_mirror row_mask:0xf bank_mask:0xf" % (r, r, r))
        A.e("s_nop 1")
        A.e("v_add_f32_dpp v%d, v%d, v%d row_mirror row_mask:0xf bank_mask:0xf" % (r, r, r))
        A.e("v_mov_b32 v%d, v%d" % (t, r))
        A.e("s_nop 1")
        A.e("v_permlane16_swap_b32 v%d, v%d" % (r, t))
        A.e("s_nop 1")
        A.e("v_add_f32 v%d, v%d, v%d" % (r, r, t))
    A.e("v_add_f32 v6, v24, v25")
    A.e("v_add_f32 v7, v26, v27")
    for i in range(4, 24, 2):
        A.e("v_add_f32 v6, v6, v%d" % (24 + i))
        A.e("v_add_f32 v7, v7, v%d" % (25 + i))
    A.e("v_add_f32 v6, v6, v7")
    reduce32(6, 7)
    A.e("v_mul_f32 v6, s19, v6")
    A.e("v_mov_b32 v20, 0"); A.e("v_mov_b32 v21, 0")
    for i in range(0, 24, 2):
        if i == 16: A.e("s_mov_b64 exec, s[20:21]")
        A.e("v_sub_f32 v48, v%d, v6" % (24 + i))
        A.e("v_sub_f32 v49, v%d, v6" % (25 + i))
        A.e("v_fmac_f32 v20, v48, v48")
        A.e("v_fmac_f32 v21, v49, v49")
    A.e("s_mov_b64 exec, -1")
    A.e("v_add_f32 v20, v20, v21")
    reduce32(20, 21)
    A.e("v_mul_f32 v20, s19, v20")
    def rbf(r):
        A.e("v_cvt_pk_bf16_f32 v%d, v%d, v%d" % (r, r, r))
        A.e("v_and_b32 v%d, 0xffff0000, v%d" % (r, r))
    rbf(6); rbf(20)
    A.e("v_add_f32 v20, 0x%x, v20" % f2u(1e-5))
    rbf(20)
    A.e("v_sqrt_f32 v20, v20")
    A.e("s_nop 0")
    rbf(20)
    A.e("v_rcp_f32 v20, v20")
    for i in range(12):
        a, b = 24 + 2 * i, 25 + 2 * i
        A.e("v_sub_f32 v%d, v%d, v6" % (a, a))
        A.e("v_sub_f32 v%d, v%d, v6" % (b, b))
        A.e("v_cvt_pk_bf16_f32 v48, v%d, v%d" % (a, b))
        A.e("v_lshlrev_b32 v%d, 16, v48" % a)
        A.e("v_and_b32 v%d, 0xffff0000, v48" % b)
        A.e("v_mul_f32 v%d, v%d, v20" % (a, a))
        A.e("v_mul_f32 v%d, v%d, v20" % (b, b))
        A.e("v_cvt_pk_bf16_f32 v%d, v%d, v%d" % (8 + i, a, b))
    A.e("buffer_store_dwordx4 v[8:11], v4, s[12:15], s16 offen")
    A.e("buffer_store_dwordx4 v[12:15], v4, s[12:15], s17 offen")
    A.e("s_mov_b64 exec, s[20:21]")
    A.e("buffer_store_dwordx4 v[16:19], v4, s[12:15], s18 offen")
    stamp_end(A, opt, 0, 24)
    A.label("K0_END")
    A.e("s_endpgm")
    return kernel_desc("k0_ln_kernel", 56, 102 if opt.get("stamp") else 48)

def gen_k1(A, opt):
    D = opt.get("k1_D", 4)
    NB = D + 1
    kernel_begin(A, "k1_gemm1_kernel")
    XF = 0
    ACC = 144
    AB = 208
    VA = 232
    VQ = 236
    VO = 239
    VL16 = 242
    VQS = 243
    T = 244
    assert NB * 4 <= 24
    A.e("s_cmp_ge_u32 s2, 256")
    A.e("s_cbranch_scc1 K1_END")
    stamp_begin(A, opt)
    A.e("s_load_dwordx2 s[4:5], s[0:1], 8")
    A.e("s_load_dwordx4 s[8:11], s[0:1], 32")
    A.e("s_load_dwordx2 s[6:7], s[0:1], 72")
    A.e("v_lshrrev_b32 v%d, 6, v0" % T)
    A.e("v_and_b32 v%d, 63, v0" % (T + 1))
    A.e("v_readfirstlane_b32 s12, v%d" % T)
    L = T + 1
    A.e("s_and_b32 s13, s2, 7")
    A.e("s_lshr_b32 s14, s2, 3")
    if opt.get("k1_map", 0) == 0:
        A.e("s_lshr_b32 s15, s13, 2"); A.e("s_lshl_b32 s15, s15, 2"); A.e("s_and_b32 s32, s14, 3"); A.e("s_add_u32 s15, s15, s32")
        A.e("s_and_b32 s32, s13, 3"); A.e("s_lshl_b32 s32, s32, 3"); A.e("s_lshr_b32 s33, s14, 2"); A.e("s_add_u32 s32, s32, s33")
    else:
        A.e("s_and_b32 s15, s14, 7")
        A.e("s_lshl_b32 s32, s13, 2"); A.e("s_lshr_b32 s33, s14, 3"); A.e("s_add_u32 s32, s32, s33")
    SMT, SG = 15, 32
    A.e("s_lshl_b32 s33, s%d, 3" % SMT); A.e("s_add_u32 s33, s33, s12")
    A.e("v_lshlrev_b32 v%d, 4, v%d" % (VL16, L))
    A.e("s_mul_i32 s34, s%d, 9" % SG)
    A.e("s_add_u32 s35, s34, 3"); A.e("s_and_b32 s35, s35, 0xfffffffc")
    A.e("s_sub_u32 s36, s35, s34")
    A.e("s_cmp_eq_u32 s36, 1"); A.e("s_cselect_b32 s37, 1, 0")
    for t in range(4):
        A.e("s_add_u32 s%d, s35, %d" % (40 + t, t))
    for t in range(4):
        A.e("s_add_u32 s38, s37, %d" % t)
        A.e("s_cmp_ge_u32 s38, s36"); A.e("s_cselect_b32 s39, 4, 0")
        A.e("s_add_u32 s38, s38, s39"); A.e("s_add_u32 s%d, s38, s34" % (44 + t))
    A.e("s_cmp_eq_u32 s36, 1"); A.e("s_cselect_b32 s38, 0, 8"); A.e("s_add_u32 s48, s38, s34")
    A.e("s_and_b32 s38, s12, 1")
    A.e("s_lshl_b32 s39, s38, 1")
    A.e("v_lshrrev_b32 v%d, 3, v%d" % (T + 2, L))
    A.e("v_bfe_u32 v%d, v%d, 1, 2" % (T + 3, L))
    A.e("v_bfe_u32 v%d, v%d, 4, 1" % (T + 4, L))
    A.e("v_or_b32 v%d, s39, v%d" % (T + 5, T + 4))
    A.e("v_xor_b32 v%d, v%d, v%d" % (T + 5, T + 5, T + 3))
    A.e("s_lshr_b32 s39, s12, 1"); A.e("s_lshl_b32 s39, s39, 3")
    A.e("v_add_u32 v%d, s39, v%d" % (T + 6, T + 2))
    A.e("v_mul_u32_u24 v%d, 9216, v%d" % (T + 6, T + 6))
    A.e("v_and_b32 v%d, 1, v%d" % (T + 7, L))
    A.e("v_lshl_add_u32 v%d, v%d, 4, v%d" % (T + 6, T + 7, T + 6))
    A.e("v_add_u32 v%d, s35, v%d" % (VO, T + 5))
    A.e("v_lshl_add_u32 v%d, v%d, 5, v%d" % (VO, VO, T + 6))
    A.e("v_add_u32 v%d, s37, v%d" % (VO + 1, T + 5))
    A.e("v_cmp_le_u32 vcc, s36, v%d" % (VO + 1))
    A.e("v_add_u32 v%d, s34, v%d" % (VO + 1, VO + 1))
    A.e("v_add_u32 v%d, 4, v%d" % (VO + 2, VO + 1))
    A.e("v_cndmask_b32 v%d, v%d, v%d, vcc" % (VO + 1, VO + 1, VO + 2))
    A.e("v_lshl_add_u32 v%d, v%d, 5, v%d" % (VO + 1, VO + 1, T + 6))
    A.e("s_min_u32 s49, s%d, 26" % SG)
    A.e("v_lshlrev_b32 v%d, 1, v%d" % (T + 4, T + 4))
    A.e("v_xor_b32 v%d, v%d, v%d" % (T + 4, T + 4, T + 3))
    A.e("s_lshl_b32 s39, s12, 3")
    A.e("v_add_u32 v%d, s39, v%d" % (T + 2, T + 2))
    A.e("v_mul_u32_u24 v%d, 3456, v%d" % (T + 2, T + 2))
    A.e("v_lshl_add_u32 v%d, v%d, 5, v%d" % (T + 2, T + 4, T + 2))
    A.e("s_lshl_b32 s39, s49, 7")
    A.e("v_add_u32 v%d, s39, v%d" % (T + 2, T + 2))
    A.e("v_lshrrev_b32 v%d, 1, v%d" % (T + 3, L))
    A.e("v_mul_u32_u24 v%d, 9216, v%d" % (T + 3, T + 3))
    A.e("s_lshl_b32 s39, s48, 5")
    A.e("v_add_u32 v%d, s39, v%d" % (T + 3, T + 3))
    A.e("s_cmp_lt_u32 s12, 4")
    A.e("s_cselect_b64 vcc, -1, 0")
    A.e("v_cndmask_b32 v%d, v%d, v%d, vcc" % (VO + 2, T + 3, T + 2))
    A.e("v_lshl_add_u32 v%d, v%d, 4, v%d" % (VO + 2, T + 7, VO + 2))
    A.e("s_mov_b32 s51, %d" % (32 * 9216))
    A.e("s_cselect_b32 s51, %d, s51" % (32 * 3456))
    A.e("s_lshl_b32 s52, s12, 10")
    A.e("s_cmp_eq_u32 s12, 5"); A.e("s_cselect_b32 s53, %d, s52" % (5 * 1024 + 128))
    A.e("s_cmp_ge_u32 s12, 6"); A.e("s_cselect_b32 s53, %d, s53" % (7 * 1024))
    A.e("s_waitcnt lgkmcnt(0)")
    A.e("s_bitcmp1_b32 s12, 0")
    A.e("s_cselect_b64 s[16:17], s[10:11], s[8:9]")
    A.e("s_and_b32 s17, s17, 0xffff")
    A.e("s_mov_b32 s18, 0x%x" % SZ_W); A.e("s_mov_b32 s19, 0x00020000")
    A.e("s_cmp_lt_u32 s12, 4")
    A.e("s_cselect_b64 s[20:21], s[4:5], s[16:17]")
    A.e("s_cselect_b32 s22, 0x%x, s18" % SZ_WQKV)
    A.e("s_and_b32 s21, s21, 0xffff")
    A.e("s_cmp_ge_u32 s12, 6"); A.e("s_cselect_b32 s22, 0, s22")
    A.e("s_mov_b32 s23, 0x00020000")
    srd(A, 24, 6, WS_SIZE)
    srd(A, 28, 6, WS_SIZE)
    A.e("s_cmp_ge_u32 s%d, 27" % SG); A.e("s_cselect_b32 s30, 0, s30")
    A.e("s_mul_i32 s54, s33, %d" % (36 * 1024))
    if XNF: A.e("s_add_u32 s54, s54, 0x%x" % XNF)
    A.e("s_mov_b32 s50, 0")
    state = {"n": 0}
    def dma_issue(S, j):
        p, st = divmod(S, 6)
        ldsoff = st * 24576 + j * 8192
        base = 53 if p == 2 else 52
        def f():
            if S == 6 or S == 12:
                if j == 0: A.e("s_mov_b32 s50, 0")
            state[("iss", S, j)] = 1
            A.e("s_add_u32 m0, s%d, 0x%x" % (base, ldsoff))
            A.e("s_nop 0")
            A.vmem("buffer_load_dwordx4 v%d, s[%d:%d], s50 offen lds" % (VO + p, 20 if p == 2 else 16, 23 if p == 2 else 19), ("dma", S))
            if p == 2: A.e("s_add_u32 s50, s50, s51")
            else: A.e("s_add_u32 s50, s50, %d" % (32 * 9216))
        return f
    def x_issue(ks):
        def f():
            if ks % 4 == 0 and ks > 0: A.e("s_add_u32 s54, s54, 4096")
            A.vmem("buffer_load_dwordx4 %s, v%d, s[24:27], s54 offen offset:%d" % (v(XF + 4 * ks, 4), VL16, (ks % 4) * 1024), ("x", ks))
        return f
    PRE = opt.get("k1_pre", 2)
    early = []
    for S in range(6):
        fs = [x_issue(ks) for ks in range(6 * S, 6 * S + 6)] + [dma_issue(S, j) for j in range(3)]
        if S < PRE:
            for f in fs: f()
        else: early.extend(fs)
    A.e("v_bfe_u32 v%d, v%d, 4, 1" % (T + 2, L))
    A.e("v_bfe_u32 v%d, v%d, 5, 1" % (T + 3, L))
    A.e("v_bfe_u32 v%d, v%d, 2, 2" % (T + 4, L))
    A.e("v_and_b32 v%d, 3, v%d" % (T + 5, L))
    A.e("v_lshlrev_b32 v%d, 3, v%d" % (T + 5, T + 5))
    A.e("v_lshl_add_u32 v%d, v%d, 7, v%d" % (T + 6, T + 4, T + 5))
    A.e("v_bfe_u32 v%d, v%d, 3, 1" % (T + 7, L))
    A.e("v_lshl_or_b32 v%d, v%d, 1, v%d" % (T, T + 2, T + 7))
    A.e("v_lshl_add_u32 v%d, v%d, 11, v%d" % (VQ, T + 3, T + 6))
    A.e("v_lshl_add_u32 v%d, v%d, 10, v%d" % (VQ, T + 2, VQ))
    for t in range(4):
        A.e("v_xor_b32 v%d, %d, v%d" % (VA + t, t, T))
        A.e("v_lshl_add_u32 v%d, v%d, 5, v%d" % (VA + t, VA + t, VQ))
    A.e("v_lshl_or_b32 v%d, v%d, 1, v%d" % (T, T + 7, T + 2))
    A.e("v_lshl_add_u32 v%d, v%d, 10, v%d" % (T + 6, T + 3, T + 6))
    A.e("v_lshl_add_u32 v%d, v%d, 5, v%d" % (VQ + 1, T, T + 6))
    A.e("v_xor_b32 v%d, 2, v%d" % (T, T))
    A.e("v_lshl_add_u32 v%d, v%d, 5, v%d" % (VQ + 2, T, T + 6))
    A.e("v_mul_u32_u24 v%d, 1152, v%d" % (VQ, T + 2))
    A.e("v_lshl_add_u32 v%d, v%d, 8, v%d" % (VQ, T + 3, VQ))
    A.e("v_lshl_add_u32 v%d, v%d, 5, v%d" % (VQ, T + 4, VQ))
    A.e("v_add_u32 v%d, v%d, v%d" % (VQ, T + 5, VQ))
    A.e("v_add_u32 v%d, 4096, v%d" % (VQ, VQ))
    A.e("v_and_b32 v%d, 31, v%d" % (VQS, L))
    A.e("v_lshlrev_b32 v%d, 3, v%d" % (VQS, VQS))
    A.e("v_lshl_add_u32 v%d, v%d, 14, v%d" % (VQS, T + 3, VQS))
    A.e("s_mul_i32 s55, s33, 288")
    for i in range(9):
        A.e("s_add_u32 s%d, s%d, s55" % (40 + i, 40 + i))
        A.e("s_lshl_b32 s%d, s%d, 10" % (40 + i, 40 + i))
        A.e("s_add_u32 s%d, s%d, 0x%x" % (40 + i, 40 + i, HF))
    A.e("s_lshl_b32 s56, s49, 18"); A.e("s_lshl_b32 s57, s33, 8"); A.e("s_add_u32 s56, s56, s57"); A.e("s_add_u32 s56, s56, 0x%x" % QKV)
    A.e("s_mov_b32 s58, 0x%x" % NLOG2E)

    pf = []
    PF0 = opt.get("k1_pf0", 200)
    if opt.get("k1_pf", 1):
        A.e("s_load_dwordx2 s[60:61], s[0:1], 48")
        A.e("s_load_dwordx2 s[62:63], s[0:1], 16")
        A.e("s_and_b32 s59, s13, 3"); A.e("s_mul_i32 s59, s59, %d" % (1152 * 1152))
        A.e("s_lshl_b32 s72, s14, 3"); A.e("s_add_u32 s72, s72, s12")
        A.e("s_mul_i32 s73, s72, %d" % (41 * 128)); A.e("s_add_u32 s59, s59, s73")
        A.e("s_and_b32 s74, s13, 1"); A.e("s_mul_i32 s74, s74, %d" % (288 * 1152)); A.e("s_mul_i32 s73, s72, %d" % (11 * 128)); A.e("s_add_u32 s74, s74, s73")
        A.e("v_lshlrev_b32 v%d, 7, v%d" % (T + 2, L))
        A.e("s_waitcnt lgkmcnt(0)")
        srd(A, 64, 60, SZ_W); srd(A, 68, 62, SZ_WO)
        def pf1():
            A.e("s_mov_b32 exec_hi, 0x1ff")
            A.vmem("buffer_load_dword v%d, v%d, s[64:67], s59 offen" % (T + 3, T + 2), "pf")
            A.e("s_mov_b32 exec_hi, -1")
        def pf2():
            A.e("s_mov_b64 exec, 0x7ff")
            A.vmem("buffer_load_dword v%d, v%d, s[68:71], s74 offen" % (T + 3, T + 2), "pf")
            A.e("s_mov_b64 exec, -1")
        pf = [pf1, pf2]
    seq = []
    groups = []
    for p in range(3):
        nt = 3 if p == 2 else 4
        if p == 0: gl = [[0], [1], [2], [3], [4, 5]]
        else: gl = [[0, 1], [2], [3], [4, 5]]
        for g in gl:
            groups.append((len(seq), [6 * p + st for st in g]))
            for t in range(nt):
                for st in g:
                    for kk6 in range(6):
                        seq.append((p, t, 6 * st + kk6))
    N = len(seq)
    gstart = {g[0]: gi for gi, g in enumerate(groups)}
    fill = [[] for _ in range(N + 40)]
    last = {}; first = {}
    for i, (p, t, ks) in enumerate(seq):
        last[(p, t)] = i
        first.setdefault((p, t), i)
    def ffn_epi(p, t):
        a = ACC + 16 * t
        ops = []
        sreg = 40 + 4 * p + t if p < 2 else 48
        for j in range(8):
            ops.append("v_mul_f32 v%d, v%d, v%d" % (a + 8 + j, a + j, a + 8 + j))
            ops.append("v_mul_f32 v%d, s58, v%d" % (a + j, a + j))
        for j in range(8): ops.append("v_exp_f32 v%d, v%d" % (a + j, a + j))
        for j in range(8): ops.append("v_add_f32 v%d, 1.0, v%d" % (a + j, a + j))
        for j in range(8): ops.append("v_rcp_f32 v%d, v%d" % (a + j, a + j))
        for j in range(8): ops.append("v_mul_f32 v%d, v%d, v%d" % (a + 8 + j, a + j, a + 8 + j))
        for j in range(4): ops.append("v_cvt_pk_bf16_f32 v%d, v%d, v%d" % (a + j, a + 8 + 2 * j, a + 9 + 2 * j))
        ops.append(("vm", "buffer_store_dwordx4 %s, v%d, s[24:27], s%d offen%s" % (v(a, 4), VL16, sreg, STF[opt.get("k1_st", 0)])))
        return ops
    def qkv_epi(t):
        a = ACC + 16 * t
        ops = []
        for j in range(8): ops.append("v_cvt_pk_bf16_f32 v%d, v%d, v%d" % (a + j, a + 2 * j, a + 2 * j + 1))
        for q in range(4):
            ops.append("s_add_u32 s57, s56, 0x%x" % ((8 * (t - 1) + 2 * q) * 16384))
            ops.append(("vm", "buffer_store_dwordx2 %s, v%d, s[28:31], s57 offen%s" % (v(a + 2 * q, 2), VQS, STF[opt.get("k1_st", 0)])))
        return ops
    cur = 0
    RATE = opt.get("k1_nsl", 16)
    tail_ops = []
    for p in range(3):
        for t in range(3 if p == 2 else 4):
            ops = ffn_epi(p, t) if (p < 2 or t == 0) else qkv_epi(t)
            start = max(cur, last[(p, t)] + 4)
            dead = first.get((p + 1, t), None)
            nsl = RATE if p < 2 else (len(ops) + 4) // 5
            for k, op in enumerate(ops):
                fill[start + k * nsl // len(ops)].append(op)
            pos = start + nsl
            cur = pos
            if dead is not None: assert pos - 1 < dead - 1, (p, t, pos, dead)
    awin = {}
    def areg(p, t):
        return (VQ + t) if p == 2 else (VA + t)
    def emit_reads(i):
        p, t, ks = seq[i]
        st, kk6 = divmod(ks, 6)
        ch, kk = divmod(kk6, 2)
        r = areg(p, t)
        win = (st // 2) * 49152
        curw = awin.get(r, 0)
        if win != curw:
            d = win - curw
            if d > 0: A.e("v_add_u32 v%d, 0x%x, v%d" % (r, d, r))
            else: A.e("v_subrev_u32 v%d, 0x%x, v%d" % (r, -d, r))
            awin[r] = win
        base = (st % 2) * 24576 + ch * 8192
        b = AB + 4 * (i % NB)
        for rr in range(2):
            if p < 2: off = base + kk * 4096 + rr * 512
            elif t == 0: off = base + kk * 512 + rr * 128
            else: off = base + kk * 2048 + rr * 512
            if opt.get("k1_noread") and i >= NB: continue
            if opt.get("k1_halfread") and i >= NB and i % 2: continue
            if opt.get("k1_plainread"):
                A.lds("ds_read_b64 %s, v%d offset:%d" % (v(b + 2 * rr, 2), r, off), ("a", i)); continue
            A.lds("ds_read_b64_tr_b16 %s, v%d offset:%d" % (v(b + 2 * rr, 2), r, off), ("a", i))
    pend_dma = []
    def barrier_for(gi):
        stages = groups[gi][1]
        if not opt.get("k1_nodma"):
            for S in stages: assert ("iss", S, 2) in state, ("dma not issued", S)
        A.wait(vm=[("dma", S) for S in stages], lg_all=(gi > 0))
        if opt.get("gstamp") == 1: A.e("s_memtime s[%d:%d]" % (60 + 2 * gi, 61 + 2 * gi))
        if not opt.get("k1_nobar"): A.e("s_barrier")
        if opt.get("gstamp") == 2: A.e("s_memtime s[%d:%d]" % (60 + 2 * gi, 61 + 2 * gi))
        if gi > 0:
            for S in groups[gi - 1][1]:
                if S + 6 < 18 and not opt.get("k1_nodma"):
                    for j in range(3): pend_dma.append(dma_issue(S + 6, j))
    barrier_for(0)
    stamp_mid(A, opt)
    nread = 0
    for i in range(D):
        emit_reads(nread); nread += 1
    for i in range(N):
        p, t, ks = seq[i]
        A.wait(lg=("a", i), vm=("x", ks) if p == 0 else None)
        a = ACC + 16 * t
        c = "0" if first[(p, t)] == i else v(a, 16)
        if opt.get("k1_fake16"):
            for hh in range(2):
                aa = a + 4 * ((2 * i + hh) % 4)
                A.e("v_mfma_f32_16x16x32_bf16 %s, %s, %s, %s" % (v(aa, 4), v(AB + 4 * (i % NB), 4), v(XF + 4 * ((ks + hh) % 36 if p else max(0, ks - hh)), 4), v(aa, 4)))
        elif not opt.get("k1_nomfma"): A.e("v_mfma_f32_32x32x16_bf16 %s, %s, %s, %s" % (v(a, 16), v(AB + 4 * (i % NB), 4), v(XF + 4 * ks, 4), c))
        target = min(N, i + D + 1)
        while nread < target:
            if nread in gstart:
                if nread > i + D - 1 and ("bar", nread) not in state:
                    break
                if ("bar", nread) not in state:
                    barrier_for(gstart[nread]); state[("bar", nread)] = 1
            emit_reads(nread); nread += 1
        for op in fill[i]:
            if isinstance(op, tuple):
                if not opt.get("k1_nost"): A.vmem(op[1], "st")
            elif not opt.get("k1_noepi"): A.e(op)
        if early:
            if i % opt.get("k1_eint", 2) == 0: early.pop(0)()
        elif pend_dma and i % (2 if len(pend_dma) > 6 else 3) == 0:
            pend_dma.pop(0)()
        elif pf and i >= PF0 and i % 4 == 1:
            pf.pop(0)()
    assert not pend_dma
    A.e("s_nop 7"); A.e("s_nop 3")
    for i in range(N, len(fill)):
        for op in fill[i]:
            if isinstance(op, tuple): A.vmem(op[1], "st")
            else: A.e(op)
    if opt.get("gstamp"):
        A.e("s_memtime s[86:87]")
        A.e("s_waitcnt vmcnt(0) lgkmcnt(0)")
        for gi in range(14):
            A.e("s_sub_u32 s%d, s%d, s94" % (60 + 2 * gi, 60 + 2 * gi))
            A.e("v_mov_b32 v%d, s%d" % (gi, 60 + 2 * gi))
        A.e("v_mov_b32 v14, 0"); A.e("v_mov_b32 v15, 0"); A.e("v_mov_b32 v16, 0")
        A.e("s_lshl_b32 s60, s2, 9"); A.e("s_lshl_b32 s61, s12, 6"); A.e("s_add_u32 s60, s60, s61"); A.e("s_add_u32 s60, s60, 0x%x" % (STAMP + 0x80000))
        A.e("s_mov_b32 s26, 0x10000000")
        A.e("s_mov_b64 exec, 1")
        for q in range(4): A.e("buffer_store_dwordx4 v[%d:%d], v16, s[24:27], s60 offen offset:%d" % (4 * q, 4 * q + 3, 16 * q))
        A.e("s_mov_b64 exec, -1")
    stamp_end(A, opt, 1, 0, 12)
    A.label("K1_END")
    A.e("s_endpgm")
    return kernel_desc("k1_gemm1_kernel", 256, 102 if opt.get("stamp") else 80)

def gen_touch(A, opt):
    sh = opt.get("touch")
    kernel_begin(A, "kt_touch_kernel")
    A.e("s_cmp_ge_u32 s2, 256")
    A.e("s_cbranch_scc1 KT_END")
    A.e("s_load_dwordx16 s[4:19], s[0:1], 0")
    A.e("s_load_dwordx2 s[20:21], s[0:1], 72")
    A.e("s_lshr_b32 s3, s2, 3"); A.e("s_lshl_b32 s3, s3, 8")
    A.e("v_add_u32 v1, s3, v0")
    A.e("v_lshlrev_b32 v1, %d, v1" % sh)
    A.e("s_waitcnt lgkmcnt(0)")
    bl = [(4, SZ_X), (6, SZ_WQKV), (8, SZ_WO), (12, SZ_W), (14, SZ_W), (16, SZ_W), (18, SZ_X), (20, WS_SIZE)]
    if opt.get("touch_ws_only"): bl = bl[-2:]
    if opt.get("touch_in_only"): bl = bl[:-2]
    for n, (b, sz) in enumerate(bl):
        srd(A, 24 + 4 * n, b, sz)
        cover = 8192 << sh
        for o in range(0, sz, cover):
            A.e("s_mov_b32 s22, 0x%x" % o)
            A.e("buffer_load_dword v2, v1, s[%d:%d], s22 offen" % (24 + 4 * n, 27 + 4 * n))
    A.label("KT_END")
    A.e("s_endpgm")
    return kernel_desc("kt_touch_kernel", 8, 64)

HEADER = """; Kernarg layout for this problem (80 bytes, ptrs only, base s[0:1]):
"""

def build(opt):
    A = Asm()
    launches = []
    descs = []
    descs.append(gen_k0(A, opt)); launches.append("; @launch kernel=k0_ln_kernel grid=(256,1,1) block=(256,1,1) lds=0")
    descs.append(gen_k1(A, opt)); launches.append("; @launch kernel=k1_gemm1_kernel grid=(256,1,1) block=(512,1,1) lds=147456")
    if not opt.get("only1"):
        import gen2
        gen2.add(A, opt, launches, descs)
    if opt.get("touch"):
        descs.append(gen_touch(A, opt)); launches.insert(0, "; @launch kernel=kt_touch_kernel grid=(256,1,1) block=(256,1,1) lds=0")
    for k in range(4):
        if opt.get("copy%d" % k):
            import gen2
            B = Asm()
            d = [gen_k0, gen_k1, gen2.gen_k2, gen2.gen_k3][k](B, opt)
            ren = lambda t: t.replace("k%d_" % k, "c%d_" % k).replace("K%d_" % k, "C%d_" % k)
            A.lines.extend(ren(l) for l in B.lines); descs.append(ren(d))
            j = [n for n, l in enumerate(launches) if "kernel=k%d_" % k in l][0]
            launches.insert(j, ren(launches[j]))
    A.label("CODE_END")
    for i in range(opt.get("extra", 0)):
        if i == 0:
            kernel_begin(A, "kx_empty_kernel"); A.e("s_endpgm"); descs.append(kernel_desc("kx_empty_kernel", 8, 16))
        launches.insert(0 if opt.get("front") else len(launches), "; @launch kernel=kx_empty_kernel grid=(256,1,1) block=(256,1,1) lds=0")
    for k in range(4):
        for i in range(opt.get("dup%d" % k, 0)):
            j = [n for n, l in enumerate(launches) if "kernel=k%d_" % k in l][0]
            launches.insert(j, launches[j])
    return HEADER + "\n".join(launches) + "\n" + '.amdgcn_target "amdgcn-amd-amdhsa--gfx950"\n' + A.text() + "".join(descs)

if __name__ == "__main__":
    opt = {}
    out = "cdna_kernels/%s.s" % NAME
    for a in sys.argv[1:]:
        if a.startswith("out="): out = a[4:]
        else:
            k, val = a.split("="); opt[k] = int(val)
    open(out, "w").write(build(opt))
    print("wrote", out)
```

```python
from asmlib import *
import gen as G

def gen_k2(A, opt):
    kernel_begin(A, "k2_gemm2_kernel")
    T = 240
    L = T + 1
    A.e("s_cmp_ge_u32 s2, 256")
    A.e("s_cbranch_scc1 K2_END")
    G.stamp_begin(A, opt)
    A.e("s_load_dwordx2 s[4:5], s[0:1], 48")
    A.e("s_load_dwordx2 s[8:9], s[0:1], 16")
    A.e("s_load_dwordx2 s[6:7], s[0:1], 72")
    A.e("s_load_dwordx2 s[10:11], s[0:1], 0")
    A.e("s_load_dwordx2 s[28:29], s[0:1], 56")
    XC = opt.get("xchg", 1)
    A.e("v_lshrrev_b32 v%d, 6, v0" % T)
    A.e("v_and_b32 v%d, 63, v0" % L)
    A.e("v_readfirstlane_b32 s12, v%d" % T)
    A.e("s_and_b32 s13, s2, 7")
    A.e("s_lshr_b32 s14, s2, 3")
    VL16 = 238
    VW = 239
    A.e("v_lshlrev_b32 v%d, 4, v%d" % (VL16, L))
    A.e("v_lshrrev_b32 v%d, 3, v%d" % (T + 2, L))
    A.e("v_bfe_u32 v%d, v%d, 1, 2" % (T + 3, L))
    A.e("v_bfe_u32 v%d, v%d, 4, 1" % (T + 4, L))
    A.e("v_lshlrev_b32 v%d, 1, v%d" % (T + 4, T + 4))
    A.e("v_xor_b32 v%d, v%d, v%d" % (T + 3, T + 3, T + 4))
    A.e("v_mul_u32_u24 v%d, 1152, v%d" % (VW, T + 2))
    A.e("v_lshl_add_u32 v%d, v%d, 5, v%d" % (VW, T + 3, VW))
    A.e("v_and_b32 v%d, 1, v%d" % (T + 4, L))
    A.e("v_lshl_add_u32 v%d, v%d, 4, v%d" % (VW, T + 4, VW))
    VT0 = 236; VT1 = 237
    A.e("v_bfe_u32 v%d, v%d, 4, 1" % (T + 2, L))
    A.e("v_bfe_u32 v%d, v%d, 5, 1" % (T + 3, L))
    A.e("v_bfe_u32 v%d, v%d, 2, 2" % (T + 4, L))
    A.e("v_and_b32 v%d, 3, v%d" % (T + 5, L))
    A.e("v_lshlrev_b32 v%d, 3, v%d" % (T + 5, T + 5))
    A.e("v_lshl_add_u32 v%d, v%d, 7, v%d" % (T + 5, T + 4, T + 5))
    A.e("v_lshl_add_u32 v%d, v%d, 9, v%d" % (T + 5, T + 3, T + 5))
    A.e("v_bfe_u32 v%d, v%d, 3, 1" % (T + 6, L))
    A.e("v_lshl_or_b32 v%d, v%d, 1, v%d" % (T + 6, T + 6, T + 2))
    A.e("v_lshl_add_u32 v%d, v%d, 5, v%d" % (VT0, T + 6, T + 5))
    A.e("v_xor_b32 v%d, 64, v%d" % (VT1, VT0))
    A.e("s_waitcnt lgkmcnt(0)")
    srd(A, 16, 4, G.SZ_W)
    srd(A, 20, 8, G.SZ_WO)
    srd(A, 24, 6, G.WS_SIZE)
    A.e("s_cmp_ge_u32 s14, 24")
    A.e("s_cbranch_scc1 %s" % ("K2_END" if opt.get("k2_noatt") else "K2_ATT"))
    if opt.get("k2_noffn"): A.e("s_branch K2_END")
    A.e("s_and_b32 s15, s13, 3")
    A.e("s_lshr_b32 s32, s13, 2"); A.e("s_lshl_b32 s32, s32, 3"); A.e("s_and_b32 s33, s14, 7"); A.e("s_add_u32 s32, s32, s33")
    A.e("s_lshr_b32 s33, s14, 3")
    A.e("s_cmp_ge_u32 s12, 4")
    A.e("s_cbranch_scc1 K2_FLOAD")
    NST = 18
    SLOT = 40960
    ACC = 0
    FB = 96
    VAa = 140
    VBa = 143
    A.e("s_and_b32 s34, s12, 1"); A.e("s_lshr_b32 s35, s12, 1")
    A.e("s_cmp_eq_u32 s35, 0")
    A.e("s_cselect_b64 vcc, -1, 0")
    A.e("v_cndmask_b32 v%d, v%d, v%d, vcc" % (VAa, VT1, VT0))
    A.e("v_cndmask_b32 v%d, v%d, v%d, vcc" % (VAa + 1, VT0, VT1))
    A.e("v_mov_b32 v%d, v%d" % (VAa + 2, VAa))
    A.e("s_cselect_b32 s36, 0, 8192"); A.e("s_add_u32 s36, s36, 16384")
    A.e("v_add_u32 v%d, s36, v%d" % (VAa, VAa))
    A.e("s_cmp_eq_u32 s35, 0")
    A.e("s_cselect_b32 s36, 0, 16384"); A.e("s_add_u32 s36, s36, 16384")
    A.e("v_add_u32 v%d, s36, v%d" % (VAa + 1, VAa + 1))
    A.e("s_cmp_eq_u32 s35, 0")
    A.e("s_cselect_b32 s36, 0, 8192"); A.e("s_add_u32 s36, s36, %d" % (16384 + 8192))
    A.e("v_add_u32 v%d, s36, v%d" % (VAa + 2, VAa + 2))
    A.e("s_lshl_b32 s36, s34, 13")
    A.e("v_add_u32 v%d, s36, v%d" % (VBa, VL16))
    A.e("s_lshl_b32 s36, s32, 2"); A.e("s_lshl_b32 s37, s34, 1"); A.e("s_add_u32 s36, s36, s37"); A.e("s_mul_i32 s36, s36, 36")
    A.e("s_mul_i32 s37, s33, 12"); A.e("s_add_u32 s36, s36, s37"); A.e("s_mul_i32 s37, s35, 6"); A.e("s_add_u32 s36, s36, s37")
    A.e("s_lshl_b32 s36, s36, 10")
    A.e("s_mul_i32 s37, s15, %d" % G.PSET); A.e("s_add_u32 s36, s36, s37"); A.e("s_add_u32 s36, s36, 0x%x" % G.PART)
    NK = NST * 4
    cur_slot = {"s": 0}
    def reads(n):
        S, ks = divmod(n, 4)
        fb = FB + 20 * (n % 2)
        out = []
        def rb(i):
            return lambda: A.lds("ds_read_b128 %s, v%d offset:%d" % (v(fb + 4 * i, 4), VBa, i * 4096 + ks * 1024), ("b", n, i))
        def ra(t, rr):
            return lambda: A.lds("ds_read_b64_tr_b16 %s, v%d offset:%d" % (v(fb + 8 + 4 * t + 2 * rr, 2), VAa + t, (2 * ks + rr) * 1024), ("a", n, t))
        return [rb(0), ra(0, 0), ra(0, 1), rb(1), ra(1, 0), ra(1, 1), ra(2, 0), ra(2, 1)]
    def advance(S):
        d = (S % 4) * SLOT - ((S - 1) % 4) * SLOT
        for r in (VAa, VAa + 1, VAa + 2, VBa):
            if d > 0: A.e("v_add_u32 v%d, 0x%x, v%d" % (r, d, r))
            else: A.e("v_subrev_u32 v%d, 0x%x, v%d" % (r, -d, r))
    A.e("s_barrier")
    if not opt.get("mid2"): G.stamp_mid(A, opt)
    for f in reads(0): f()
    for n in range(NK):
        fb = FB + 20 * (n % 2)
        nxt = reads(n + 1) if n + 1 < NK else []
        newstage = (n + 1) % 4 == 0 and n + 1 < NK
        order = [(0, 0), (1, 0), (0, 1), (1, 1), (0, 2), (1, 2)]
        if newstage: sched = [0, 0, 3, 2, 2, 1]
        else: sched = [2, 2, 1, 1, 1, 1]
        for m, (i, t) in enumerate(order):
            A.wait(lg=[("b", n, i), ("a", n, t)])
            a = ACC + (i * 3 + t) * 16
            A.e("v_mfma_f32_32x32x16_bf16 %s, %s, %s, %s" % (v(a, 16), v(fb + 8 + 4 * t, 4), v(fb + 4 * i, 4), "0" if n == 0 else v(a, 16)))
            if newstage and m == 1:
                advance((n + 1) // 4)
                A.wait(lg_all=True)
                A.e("s_barrier")
            for _ in range(sched[m]):
                if nxt: nxt.pop(0)()
        assert not nxt
    if opt.get("mid2"): G.stamp_mid(A, opt)
    G.ms(A, opt, 0)
    A.e("s_nop 7"); A.e("s_nop 3")
    OWN = 2 * SLOT
    if not XC:
        for t in range(3):
            for i in range(2):
                a = ACC + (i * 3 + t) * 16
                for j in range(8): A.e("v_cvt_pk_bf16_f32 v%d, v%d, v%d" % (a + j, a + 2 * j, a + 2 * j + 1))
                A.e("s_add_u32 s37, s36, %d" % ((i * 36 + 2 * t) * 1024))
                A.vmem("buffer_store_dwordx4 %s, v%d, s[24:27], s37 offen%s" % (v(a, 4), VL16, G.STF[opt.get("k2_st", 0)]))
                A.vmem("buffer_store_dwordx4 %s, v%d, s[24:27], s37 offen offset:1024%s" % (v(a + 4, 4), VL16, G.STF[opt.get("k2_st", 0)]))
    else:
        A.e("s_mul_i32 s38, s12, 6144"); A.e("s_add_u32 s38, s38, %d" % OWN)
        A.e("v_add_u32 v%d, s38, v%d" % (VBa, VL16))
        for q in range(4):
            A.e("s_cmp_eq_u32 s15, %d" % q)
            A.e("s_cbranch_scc1 K2_OWN%d" % q)
            A.e("s_add_u32 s37, s36, %d" % (((q >> 1) * 36 + (q & 1) * 3) * 1024))
            for b in range(3):
                a = ACC + (3 * q + b) * 8
                for j in range(4): A.e("v_cvt_pk_bf16_f32 v%d, v%d, v%d" % (a + j, a + 2 * j, a + 2 * j + 1))
                A.e("buffer_store_dwordx4 %s, v%d, s[24:27], s37 offen offset:%d sc1" % (v(a, 4), VL16, b * 1024))
            A.e("s_branch K2_NX%d" % q)
            A.label("K2_OWN%d" % q)
            for b in range(3):
                a = ACC + (3 * q + b) * 8
                A.e("ds_write_b128 v%d, %s offset:%d" % (VBa, v(a, 4), b * 2048))
                A.e("ds_write_b128 v%d, %s offset:%d" % (VBa, v(a + 4, 4), b * 2048 + 1024))
            A.label("K2_NX%d" % q)
        A.e("s_mul_i32 s38, s32, 3"); A.e("s_add_u32 s38, s38, s33"); A.e("s_lshl_b32 s38, s38, 2"); A.e("s_add_u32 s38, s38, s12"); A.e("s_lshl_b32 s38, s38, 7")
        A.e("s_lshl_b32 s39, s15, 2"); A.e("s_add_u32 s38, s38, s39"); A.e("s_add_u32 s38, s38, 0x%x" % (G.FLG + 4096))
        A.e("v_mov_b32 v100, 1"); A.e("v_mov_b32 v101, 0")
        G.ms(A, opt, 1)
        A.e("s_waitcnt vmcnt(0) lgkmcnt(0)")
        G.ms(A, opt, 2)
        A.e("s_mov_b64 exec, 1")
        A.e("buffer_store_dword v100, v101, s[24:27], s38 offen sc1")
        A.e("s_mov_b64 exec, -1")
        A.e("s_barrier")
    G.ms_dump(A, opt, 3, 104, 12, 24)
    G.stamp_end(A, opt, 2, 100, 12)
    A.e("s_endpgm")
    A.label("K2_FLOAD")
    A.reset()
    A.e("s_sub_u32 s34, s12, 4")
    A.e("s_lshl_b32 s35, s32, 2"); A.e("s_add_u32 s35, s35, s34"); A.e("s_mul_i32 s35, s35, 288"); A.e("s_mul_i32 s36, s15, 72"); A.e("s_add_u32 s35, s35, s36")
    A.e("s_lshl_b32 s35, s35, 10"); A.e("s_add_u32 s35, s35, 0x%x" % G.HF)
    A.e("s_lshl_b32 s36, s34, 12")
    A.e("s_mul_i32 s37, s15, 1152"); A.e("s_lshl_b32 s38, s34, 4"); A.e("s_add_u32 s37, s37, s38"); A.e("s_mul_i32 s37, s37, 1152")
    A.e("s_mul_i32 s38, s33, 384"); A.e("s_add_u32 s37, s37, s38")
    A.e("s_lshl_b32 s38, s34, 11"); A.e("s_add_u32 s38, s38, 16384")
    def issue(S):
        if opt.get("k2_nodma") and S >= 4: return
        sl = (S % 4) * SLOT
        A.e("s_add_u32 m0, s36, 0x%x" % sl)
        A.e("s_nop 0")
        for k in range(4):
            if opt.get("k2_noh") and S >= 4: continue
            A.vmem("buffer_load_dwordx4 v%d, s[24:27], s35 offen offset:%d lds" % (VL16, k * 1024), ("d", S))
        A.e("s_add_u32 s35, s35, 4096")
        for e in range(2):
            for j in range(3):
                if opt.get("k2_now") and S >= 4: continue
                A.e("s_add_u32 m0, s38, 0x%x" % (sl + j * 8192 + e * 1024))
                A.e("s_add_u32 s39, s37, %d" % (e * 8 * 1152 + j * 128))
                A.vmem("buffer_load_dwordx4 v%d, s[16:19], s39 offen lds" % VW, ("d", S))
        A.e("s_add_u32 s37, s37, %d" % (64 * 1152))
    issue(0); issue(1)
    nxt = 2
    for S in range(NST):
        A.wait(vm=("d", S))
        A.e("s_barrier")
        lim = min(NST - 1, S + 3)
        while nxt <= lim:
            issue(nxt); nxt += 1
        if XC and S == NST - 4:
            srd(A, 44, 10, G.SZ_X); srd(A, 48, 28, G.SZ_X)
            A.e("s_and_b32 s40, s34, 1"); A.e("s_lshr_b32 s41, s34, 1")
            A.e("s_lshl_b32 s42, s32, 2"); A.e("s_lshl_b32 s43, s40, 1"); A.e("s_add_u32 s42, s42, s43"); A.e("s_lshr_b32 s43, s15, 1"); A.e("s_add_u32 s42, s42, s43")
            A.e("s_mul_i32 s52, s33, 12"); A.e("s_mul_i32 s43, s41, 6"); A.e("s_add_u32 s52, s52, s43"); A.e("s_and_b32 s43, s15, 1"); A.e("s_mul_i32 s43, s43, 3"); A.e("s_add_u32 s52, s52, s43")
            A.e("s_mul_i32 s53, s42, 36"); A.e("s_add_u32 s53, s53, s52"); A.e("s_lshl_b32 s53, s53, 10"); A.e("s_add_u32 s53, s53, 0x%x" % G.PART)
            A.e("s_mul_i32 s54, s42, %d" % (32 * 1152)); A.e("s_lshl_b32 s43, s52, 5"); A.e("s_add_u32 s54, s54, s43")
            A.e("v_and_b32 v4, 31, v%d" % L); A.e("v_mul_u32_u24 v4, 1152, v4")
            A.e("v_lshrrev_b32 v5, 5, v%d" % L); A.e("v_lshl_add_u32 v4, v5, 4, v4")
            A.e("v_lshlrev_b32 v6, 2, v%d" % L)
            A.e("s_mul_i32 s43, s34, 6144"); A.e("s_add_u32 s43, s43, %d" % OWN); A.e("v_add_u32 v7, s43, v%d" % VL16)
            A.e("s_lshl_b32 s55, s32, 1"); A.e("s_add_u32 s55, s55, s40"); A.e("s_lshl_b32 s55, s55, 7"); A.e("s_add_u32 s55, s55, 0x%x" % G.FLG)
            A.e("s_mul_i32 s56, s32, 3"); A.e("s_add_u32 s56, s56, s33"); A.e("s_lshl_b32 s56, s56, 2"); A.e("s_add_u32 s56, s56, s34"); A.e("s_lshl_b32 s56, s56, 7"); A.e("s_add_u32 s56, s56, 0x%x" % (G.FLG + 4096))
            for b in range(3):
                A.vmem("buffer_load_dwordx4 %s, v4, s[44:47], s54 offen offset:%d" % (v(8 + 4 * b, 4), b * 32), "x")
    if XC:
        def poll(name, soff, mask_setup):
            A.e("s_mov_b32 s57, 0x200000")
            mask_setup()
            A.label(name)
            A.e("buffer_load_dword v3, v6, s[24:27], s%d offen sc1" % soff)
            A.e("s_waitcnt vmcnt(0)")
            A.e("v_cmp_ne_u32 vcc, 0, v3")
            A.e("s_sub_u32 s57, s57, 1")
            A.e("s_cbranch_scc1 %s_X" % name)
            A.e("s_cmp_eq_u64 vcc, exec")
            A.e("s_cbranch_scc1 %s_X" % name)
            A.e("s_sleep %d" % opt.get("psleep", 2))
            A.e("s_branch %s" % name)
            A.label(name + "_X")
            A.e("s_mov_b64 exec, -1")
            A.reset()
        SUM = 100
        PB = 24
        def acc_block(src, b):
            for j in range(4):
                A.e("v_lshlrev_b32 v90, 16, v%d" % (src + j)); A.e("v_and_b32 v91, 0xffff0000, v%d" % (src + j))
                A.e("v_add_f32 v%d, v%d, v90" % (SUM + 8 * b + 2 * j, SUM + 8 * b + 2 * j)); A.e("v_add_f32 v%d, v%d, v91" % (SUM + 8 * b + 2 * j + 1, SUM + 8 * b + 2 * j + 1))
        G.ms(A, opt, 0)
        poll("K2_PA", 55, lambda: A.e("s_mov_b64 exec, 0xff"))
        G.ms(A, opt, 1)
        for hh in range(2):
            A.e("s_add_u32 s58, s53, 0x%x" % ((4 + hh) * G.PSET))
            for b in range(3):
                A.vmem("buffer_load_dwordx4 %s, v%d, s[24:27], s58 offen offset:%d sc1" % (v(PB + 12 * hh + 4 * b, 4), VL16, b * 1024), "att")
        def m2():
            A.e("s_lshl_b32 s58, 1, s15"); A.e("s_xor_b32 s58, s58, 0xf"); A.e("s_mov_b32 exec_lo, s58"); A.e("s_mov_b32 exec_hi, 0")
        A.wait(vm="att")
        for b in range(3):
            for j in range(4):
                A.e("v_lshlrev_b32 v%d, 16, v%d" % (SUM + 8 * b + 2 * j, PB + 4 * b + j)); A.e("v_and_b32 v%d, 0xffff0000, v%d" % (SUM + 8 * b + 2 * j + 1, PB + 4 * b + j))
        for b in range(3): acc_block(PB + 12 + 4 * b, b)
        G.stamp_mid(A, opt)
        G.ms(A, opt, 2)
        poll("K2_PX", 56, m2)
        G.ms(A, opt, 3)
        for d in range(1, 4):
            A.e("s_add_u32 s58, s15, %d" % d); A.e("s_and_b32 s58, s58, 3"); A.e("s_mul_i32 s58, s58, %d" % G.PSET); A.e("s_add_u32 s58, s58, s53")
            for b in range(3):
                A.vmem("buffer_load_dwordx4 %s, v%d, s[24:27], s58 offen offset:%d sc1" % (v(PB + 12 * (d - 1) + 4 * b, 4), VL16, b * 1024), ("p", d, b))
        A.e("s_barrier")
        OW = 64
        for b in range(3):
            A.lds("ds_read_b128 %s, v7 offset:%d" % (v(OW + 8 * b, 4), b * 2048), "own")
            A.lds("ds_read_b128 %s, v7 offset:%d" % (v(OW + 8 * b + 4, 4), b * 2048 + 1024), "own")
        A.wait(lg="own")
        for k in range(24): A.e("v_add_f32 v%d, v%d, v%d" % (SUM + k, SUM + k, OW + k))
        for d in range(1, 4):
            for b in range(3):
                A.wait(vm=("p", d, b))
                acc_block(PB + 12 * (d - 1) + 4 * b, b)
                if d == 3:
                    r = SUM + 8 * b
                    A.e("s_nop 1")
                    for j in range(4): A.e("v_permlane32_swap_b32 v%d, v%d" % (r + j, r + 4 + j))
                    acc_block(8 + 4 * b, b)
                    for j in range(4): A.e("v_cvt_pk_bf16_f32 v%d, v%d, v%d" % (8 + 4 * b + j, r + 2 * j, r + 2 * j + 1))
                    A.vmem("buffer_store_dwordx4 %s, v4, s[48:51], s54 offen offset:%d" % (v(8 + 4 * b, 4), b * 32), "o")
        G.ms(A, opt, 4)
        G.ms_dump(A, opt, 5, 136, 12, 24)
        G.stamp_end(A, opt, 2, 130, 12)
    A.e("s_endpgm")

    A.label("K2_ATT")
    A.reset()
    A.e("s_and_b32 s15, s13, 1")
    A.e("s_lshr_b32 s32, s13, 1"); A.e("s_lshl_b32 s32, s32, 3"); A.e("s_add_u32 s32, s32, s14"); A.e("s_sub_u32 s32, s32, 24")
    KB = 73728; VB = KB + 72 * 624
    A.e("s_mul_i32 s33, s15, 72"); A.e("s_mul_i32 s34, s12, 9"); A.e("s_add_u32 s33, s33, s34")
    A.e("s_lshl_b32 s33, s33, 14"); A.e("s_lshl_b32 s35, s32, 9"); A.e("s_add_u32 s33, s33, s35"); A.e("s_add_u32 s33, s33, 0x%x" % G.QKV)
    A.e("s_mul_i32 s36, s34, 624")
    Q = 0
    KV = 22
    LG = 60
    O = 80
    P = 120
    VL8 = 156; VKA = 157; VROW = 158
    A.e("v_lshlrev_b32 v%d, 3, v%d" % (VL8, L))
    def kv_dma(which, c):
        def f():
            A.e("s_mov_b32 exec_hi, 0x7f")
            A.e("s_add_u32 m0, s36, %d" % ((KB if which == 0 else VB) + c * 624))
            A.e("s_add_u32 s37, s33, 0x%x" % ((144 * (which + 1) + c) * 16384 - 112))
            A.vmem("buffer_load_dwordx4 v%d, s[24:27], s37 offen lds" % VL16, "k" if which == 0 else "v")
            A.e("s_mov_b32 exec_hi, -1")
        return f
    for c in range(9):
        kv_dma(0, c)()
        A.e("s_add_u32 s37, s33, 0x%x" % (c * 16384))
        A.vmem("buffer_load_dwordx2 %s, v%d, s[24:27], s37 offen" % (v(Q + 2 * c, 2), VL8), "q")
    A.e("s_and_b32 s40, s12, 3")
    A.e("s_mul_i32 s38, s15, 288"); A.e("s_mul_i32 s39, s40, 72"); A.e("s_add_u32 s38, s38, s39"); A.e("s_mul_i32 s38, s38, 1152")
    A.e("s_mul_i32 s40, s40, 9216")
    A.e("s_lshr_b32 s39, s12, 2"); A.e("s_lshl_b32 s45, s39, 7"); A.e("s_add_u32 s45, s45, s38")
    A.e("s_mul_i32 s39, s39, 36864"); A.e("s_add_u32 s39, s39, s40")
    def wo_dma(c):
        def f():
            A.e("s_add_u32 m0, s39, %d" % (c * 1024))
            A.e("s_add_u32 s37, s45, %d" % (c * 8 * 1152))
            A.vmem("buffer_load_dwordx4 v%d, s[20:23], s37 offen lds" % VW, "wo01")
        return f
    later = [kv_dma(1, c) for c in range(9)] + [wo_dma(j) for j in range(9)]
    A.e("v_add_u32 v%d, s36, v%d" % (VKA, VL8))
    A.e("v_add_u32 v%d, %d, v%d" % (VKA, KB, VKA))
    A.e("s_lshl_b32 s41, s32, 6")
    A.e("v_add_u32 v%d, s41, v%d" % (VROW, L))
    A.e("s_mov_b32 s42, 0x%x" % G.f2u(18 ** -0.5 * 1.4426950408889634))
    A.e("v_mov_b32 v%d, 0x%x" % (T + 2, G.f2u(-1e9)))
    NKB = 14; DK = 13
    def rdk(n):
        w_, c = divmod(n, 9)
        A.lds("ds_read_b64 %s, v%d offset:%d" % (v(KV + 2 * (n % NKB), 2), VKA, c * 624 + (14 - 2 * w_) * 8), (0, n))
    A.wait(vm="q")
    G.ms(A, opt, 0)
    for n in range(DK): rdk(n)
    for n in range(72):
        w_, c = divmod(n, 9)
        b = KV + 2 * (n % NKB)
        if n % 3 == 0: A.wait(lg=(0, min(71, n + 2)))
        for z in range(2):
            r = 2 * c + z
            hd = r // 9
            lg = LG + hd * 8 + w_
            A.e("v_dot2_f32_bf16 v%d, v%d, v%d, %s" % (lg, Q + r, b + z, "0" if r % 9 == 0 else "v%d" % lg))
        if n + DK < 72: rdk(n + DK)
        if n % 4 == 1 and n < 52: later.pop(0)()
    G.ms(A, opt, 1)
    KV4 = 160
    DV = 7
    def rdv(n):
        wp, c = divmod(n, 9)
        b0 = KV4 + 4 * (n % 8)
        for e in range(2):
            A.lds("ds_read_b64 %s, v%d offset:%d" % (v(b0 + 2 * e, 2), VKA, VB - KB + c * 624 + (14 - 2 * (2 * wp + e)) * 8), (1, n))
    A.e("s_nop 2")
    for w_ in range(1, 8):
        A.e("v_cmp_le_u32 vcc, %d, v%d" % (2 * w_, VROW))
        A.e("s_nop 1")
        for hd in range(2):
            lg = LG + hd * 8 + w_
            A.e("v_cndmask_b32 v%d, v%d, v%d, vcc" % (lg, T + 2, lg))
    for hd in range(2):
        lg = LG + hd * 8; m = T + 3 + hd
        A.e("v_max3_f32 v%d, v%d, v%d, v%d" % (m, lg, lg + 1, lg + 2))
        A.e("v_max3_f32 v%d, v%d, v%d, v%d" % (m, m, lg + 3, lg + 4))
        A.e("v_max3_f32 v%d, v%d, v%d, v%d" % (m, m, lg + 5, lg + 6))
        A.e("v_max_f32 v%d, v%d, v%d" % (m, m, lg + 7))
    for hd in range(2):
        for w_ in range(8):
            lg = LG + hd * 8 + w_
            A.e("v_sub_f32 v%d, v%d, v%d" % (lg, lg, T + 3 + hd))
    for k in range(16):
        A.e("v_mul_f32 v%d, s42, v%d" % (LG + k, LG + k))
        if later and k % 2 == 0: later.pop(0)()
    assert not later
    for k in range(16): A.e("v_exp_f32 v%d, v%d" % (LG + k, LG + k))
    A.wait(vm="v")
    G.ms(A, opt, 2)
    for n in range(DV): rdv(n)
    for hd in range(2):
        lg = LG + hd * 8; sm = T + 5 + hd
        A.e("v_add_f32 v%d, v%d, v%d" % (sm, lg, lg + 1))
    for w_ in range(2, 8):
        for hd in range(2):
            A.e("v_add_f32 v%d, v%d, v%d" % (T + 5 + hd, T + 5 + hd, LG + hd * 8 + w_))
    A.e("v_rcp_f32 v%d, v%d" % (T + 5, T + 5)); A.e("v_rcp_f32 v%d, v%d" % (T + 6, T + 6))
    A.e("s_nop 0")
    for k in range(16): A.e("v_mul_f32 v%d, v%d, v%d" % (LG + k, LG + k, T + 5 + k // 8))
    for hd in range(2):
        for wp in range(4):
            A.e("v_cvt_pk_bf16_f32 v%d, v%d, v%d" % (P + hd * 4 + wp, LG + hd * 8 + 2 * wp, LG + hd * 8 + 2 * wp + 1))
    G.ms(A, opt, 3)
    A.e("s_mov_b32 s43, 0x05040100"); A.e("s_mov_b32 s44, 0x07060302")
    TP = P + 8
    for n in range(36):
        wp, c = divmod(n, 9)
        b0 = KV4 + 4 * (n % 8)
        A.wait(lg=(1, n))
        if n + DV < 36: rdv(n + DV)
        for z in range(2):
            t0 = TP + 4 * (n % 2) + 2 * z
            A.e("v_perm_b32 v%d, v%d, v%d, s43" % (t0, b0 + 2 + z, b0 + z))
            A.e("v_perm_b32 v%d, v%d, v%d, s44" % (t0 + 1, b0 + 2 + z, b0 + z))
        for z in range(2):
            r = 2 * c + z
            hd = r // 9
            t0 = TP + 4 * (n % 2) + 2 * z
            for e in range(2):
                o = O + 2 * r + e
                A.e("v_dot2_f32_bf16 v%d, v%d, v%d, %s" % (o, t0 + e, P + hd * 4 + wp, "0" if wp == 0 else "v%d" % o))
    A.e("s_nop 2")
    for r in range(18): A.e("v_cvt_pk_bf16_f32 v%d, v%d, v%d" % (Q + r, O + 2 * r, O + 2 * r + 1))
    for c in range(9):
        A.lds("ds_write_b64 v%d, %s offset:%d" % (VKA, v(Q + 2 * c, 2), c * 624), "ow")
    G.ms(A, opt, 4)
    A.wait(vm_all=True, lg_all=True)
    G.ms(A, opt, 5)
    A.e("s_barrier")
    G.ms(A, opt, 6)
    A.e("s_cmp_ge_u32 s12, 4")
    A.e("s_cbranch_scc1 K2_ALOAD")
    slots = [0, 36864, VB]
    ACC = 0
    BF = 32
    AF = 104
    D = 5; NB = 6
    VA0 = 176; VBo = 178
    A.e("s_and_b32 s34, s12, 1"); A.e("s_lshr_b32 s35, s12, 1")
    A.e("s_cmp_eq_u32 s35, 0")
    A.e("s_cselect_b64 vcc, -1, 0")
    A.e("v_cndmask_b32 v%d, v%d, v%d, vcc" % (VA0, VT1, VT0))
    A.e("v_and_b32 v%d, 31, v%d" % (VBo, L)); A.e("v_lshlrev_b32 v%d, 3, v%d" % (VBo, VBo))
    A.e("v_bfe_u32 v%d, v%d, 5, 1" % (T + 3, L)); A.e("v_mul_u32_u24 v%d, 624, v%d" % (T + 3, T + 3)); A.e("v_add_u32 v%d, v%d, v%d" % (VBo, T + 3, VBo))
    A.e("s_lshl_b32 s37, s34, 8"); A.e("s_add_u32 s37, s37, %d" % KB); A.e("v_add_u32 v%d, s37, v%d" % (VBo, VBo))
    A.e("s_lshl_b32 s36, s32, 1"); A.e("s_add_u32 s36, s36, s34"); A.e("s_mul_i32 s36, s36, 36"); A.e("s_lshl_b32 s37, s35, 1"); A.e("s_add_u32 s36, s36, s37")
    A.e("s_lshl_b32 s36, s36, 10"); A.e("s_mul_i32 s37, s15, %d" % G.PSET); A.e("s_add_u32 s36, s36, s37"); A.e("s_add_u32 s36, s36, 0x%x" % (G.PART + 4 * G.PSET))
    N = 162
    cur = {"base": 0}
    done_bar = set()
    stf = " sc1" if XC else G.STF[opt.get("k2_st", 0)]
    def ereads(i):
        S, ks = divmod(i, 18)
        if ks == 0 and slots[S % 3] != cur["base"]:
            d = slots[S % 3] - cur["base"]
            if d > 0: A.e("v_add_u32 v%d, 0x%x, v%d" % (VA0, d, VA0))
            else: A.e("v_subrev_u32 v%d, 0x%x, v%d" % (VA0, -d, VA0))
            cur["base"] = slots[S % 3]
        if S == 0:
            for rr in range(2):
                A.lds("ds_read_b64 %s, v%d offset:%d" % (v(BF + 4 * ks + 2 * rr, 2), VBo, (4 * ks + 2 * rr) * 624), ("a", i))
        for rr in range(2):
            A.lds("ds_read_b64_tr_b16 %s, v%d offset:%d" % (v(AF + 4 * (i % NB) + 2 * rr, 2), VA0, (2 * ks + rr) * 1024), ("a", i))
    DEF = opt.get("att_defer", 0)
    def pk(S):
        if not DEF: return ACC + 16 * (S % 2)
        return 128 + 8 * S if S < 6 else 184 + 8 * (S - 6)
    def st(S, e):
        if e == 0: A.e("s_add_u32 s37, s36, %d" % (4 * S * 1024))
        A.vmem("buffer_store_dwordx4 %s, v%d, s[24:27], s37 offen offset:%d%s" % (v(pk(S) + 4 * e, 4), VL16, e * 1024, stf))
    def epi(S):
        a = ACC + 16 * (S % 2)
        ops = []
        for j in range(8): ops.append(lambda j=j: A.e("v_cvt_pk_bf16_f32 v%d, v%d, v%d" % (pk(S) + j, a + 2 * j, a + 2 * j + 1)))
        if not DEF:
            ops.append(lambda: st(S, 0)); ops.append(lambda: st(S, 1))
        return ops
    nread = 0
    pend = []
    for i in range(3): ereads(nread); nread += 1
    for i in range(N):
        S, ks = divmod(i, 18)
        A.wait(lg=("a", i))
        a = ACC + 16 * (S % 2)
        A.e("v_mfma_f32_32x32x16_bf16 %s, %s, %s, %s" % (v(a, 16), v(AF + 4 * (i % NB), 4), v(BF + 4 * ks, 4), "0" if ks == 0 else v(a, 16)))
        dd = 3 if i < 16 else D
        target = min(N, i + dd + 1)
        while nread < target:
            if nread % 18 == 0 and nread not in done_bar:
                if nread > i + dd - 1: break
                A.wait(lg_all=True); A.e("s_barrier"); done_bar.add(nread)
            ereads(nread); nread += 1
        if ks == 3 and S > 0: pend = epi(S - 1)
        if pend: pend.pop(0)()
    G.ms(A, opt, 7)
    A.e("s_nop 7"); A.e("s_nop 3")
    for f in epi(8): f()
    if DEF:
        for S in range(9): st(S, 0); st(S, 1)
    if XC:
        A.e("s_lshl_b32 s37, s32, 7"); A.e("s_lshl_b32 s38, s15, 4"); A.e("s_add_u32 s37, s37, s38"); A.e("s_lshl_b32 s38, s12, 2"); A.e("s_add_u32 s37, s37, s38"); A.e("s_add_u32 s37, s37, 0x%x" % G.FLG)
        A.e("v_mov_b32 v180, 1"); A.e("v_mov_b32 v181, 0")
        G.ms(A, opt, 8)
        A.e("s_waitcnt vmcnt(0)")
        G.ms(A, opt, 9)
        A.e("s_mov_b64 exec, 1")
        A.e("buffer_store_dword v180, v181, s[24:27], s37 offen sc1")
        A.e("s_mov_b64 exec, -1")
    G.ms_dump(A, opt, 10, 210, 12, 24)
    G.stamp_end(A, opt, 2, 180, 12)
    A.e("s_endpgm")
    A.label("K2_ALOAD")
    A.reset()
    def aissue(S):
        for c in range(9):
            A.e("s_add_u32 m0, s40, %d" % (slots[S % 3] + c * 1024))
            A.e("s_add_u32 s37, s38, %d" % (S * 128 + c * 8 * 1152))
            A.vmem("buffer_load_dwordx4 v%d, s[20:23], s37 offen lds" % VW, ("d", S))
    aissue(2)
    for S in range(1, 9):
        A.wait(vm=("d", S))
        A.e("s_barrier")
        if S + 2 <= 8: aissue(S + 2)
    A.label("K2_END")
    A.e("s_endpgm")
    return kernel_desc("k2_gemm2_kernel", 256, 102 if opt.get("stamp") else 64)

def gen_k3(A, opt):
    kernel_begin(A, "k3_reduce_kernel")
    A.e("s_cmp_ge_u32 s2, 256")
    A.e("s_cbranch_scc1 K3_END")
    G.stamp_begin(A, opt); G.stamp_mid(A, opt)
    A.e("s_load_dwordx2 s[4:5], s[0:1], 0")
    A.e("s_load_dwordx2 s[8:9], s[0:1], 56")
    A.e("s_load_dwordx2 s[6:7], s[0:1], 72")
    A.e("v_lshrrev_b32 v1, 6, v0")
    A.e("v_and_b32 v2, 63, v0")
    A.e("v_readfirstlane_b32 s12, v1")
    A.e("s_mul_i32 s13, s2, 9"); A.e("s_add_u32 s13, s13, s12"); A.e("s_lshl_b32 s13, s13, 10"); A.e("s_add_u32 s13, s13, 0x%x" % G.PART)
    A.e("v_lshlrev_b32 v3, 4, v2")
    A.e("s_lshr_b32 s14, s2, 2"); A.e("s_mul_i32 s14, s14, %d" % (32 * 1152))
    A.e("s_and_b32 s15, s2, 3"); A.e("s_mul_i32 s15, s15, 9"); A.e("s_add_u32 s15, s15, s12"); A.e("s_lshl_b32 s15, s15, 5"); A.e("s_add_u32 s14, s14, s15")
    A.e("v_and_b32 v4, 31, v2"); A.e("v_mul_u32_u24 v4, 1152, v4")
    A.e("v_lshrrev_b32 v5, 5, v2"); A.e("v_lshl_add_u32 v4, v5, 4, v4")
    A.e("s_waitcnt lgkmcnt(0)")
    srd(A, 16, 4, G.SZ_X); srd(A, 20, 8, G.SZ_X); srd(A, 24, 6, G.WS_SIZE)
    for k in range(6):
        A.vmem("buffer_load_dwordx4 %s, v3, s[24:27], s13 offen" % v(8 + 4 * k, 4), k)
        if k < 5: A.e("s_add_u32 s13, s13, %d" % G.PSET)
    A.vmem("buffer_load_dwordx4 v[32:35], v4, s[16:19], s14 offen", "x")
    for k in range(6):
        A.wait(vm=k)
        for j in range(4):
            r = 8 + 4 * k + j
            if k == 0:
                A.e("v_lshlrev_b32 v%d, 16, v%d" % (40 + 2 * j, r)); A.e("v_and_b32 v%d, 0xffff0000, v%d" % (41 + 2 * j, r))
            else:
                A.e("v_lshlrev_b32 v36, 16, v%d" % r); A.e("v_and_b32 v37, 0xffff0000, v%d" % r)
                A.e("v_add_f32 v%d, v%d, v36" % (40 + 2 * j, 40 + 2 * j)); A.e("v_add_f32 v%d, v%d, v37" % (41 + 2 * j, 41 + 2 * j))
    A.e("s_nop 1")
    for j in range(4): A.e("v_permlane32_swap_b32 v%d, v%d" % (40 + j, 44 + j))
    A.wait(vm="x")
    for j in range(4):
        A.e("v_lshlrev_b32 v36, 16, v%d" % (32 + j)); A.e("v_and_b32 v37, 0xffff0000, v%d" % (32 + j))
        A.e("v_add_f32 v%d, v%d, v36" % (40 + 2 * j, 40 + 2 * j)); A.e("v_add_f32 v%d, v%d, v37" % (41 + 2 * j, 41 + 2 * j))
    for j in range(4): A.e("v_cvt_pk_bf16_f32 v%d, v%d, v%d" % (8 + j, 40 + 2 * j, 41 + 2 * j))
    A.e("buffer_store_dwordx4 v[8:11], v4, s[20:23], s14 offen")
    if opt.get("stamp"): A.e("s_min_u32 s12, s12, 7")
    G.stamp_end(A, opt, 3, 12, 12)
    A.label("K3_END")
    A.e("s_endpgm")
    return kernel_desc("k3_reduce_kernel", 48, 102 if opt.get("stamp") else 32)

def add(A, opt, launches, descs):
    descs.append(gen_k2(A, opt)); launches.append("; @launch kernel=k2_gemm2_kernel grid=(256,1,1) block=(512,1,1) lds=163840")
    if not opt.get("xchg", 1):
      descs.append(gen_k3(A, opt)); launches.append("; @launch kernel=k3_reduce_kernel grid=(256,1,1) block=(576,1,1) lds=0")
```

```python
import sys
from asmlib import *

NAME = "parallel_sum__sliding_local_dilated__glu_gated_swiglu__prompt"
XNF  = 0x0000000
HF   = 0x0300000
QKV  = 0x1600000
PART = 0x1E00000
PSET = 64 * 36 * 1024
FLG  = PART + 6 * PSET
WS_SIZE = FLG + 32768
SZ_X = 2048 * 576 * 2
SZ_WQKV = 576 * 1728 * 2
SZ_WO = 576 * 576 * 2
SZ_W = 576 * 4608 * 2
STF = ["", " sc1", " nt", " sc0 sc1", " sc1 nt"]
LOG2E = 0x3fb8aa3b
NLOG2E = 0xbfb8aa3b

def f2u(x):
    import struct
    return struct.unpack("<I", struct.pack("<f", x))[0]

STAMP = 0x3000000
def stamp_begin(A, opt):
    if not opt.get("stamp"): return
    A.e("s_memrealtime s[92:93]")
    A.e("s_memtime s[94:95]")
def stamp_mid(A, opt, idx=0):
    if not opt.get("stamp"): return
    A.e("s_memtime s[88:89]")
def ms(A, opt, idx):
    if opt.get("ms"): A.e("s_memtime s[%d:%d]" % (60 + 2 * idx, 61 + 2 * idx))
def ms_dump(A, opt, n, vt, wave_sgpr, srd):
    if not opt.get("ms"): return
    A.e("s_waitcnt vmcnt(0) lgkmcnt(0)")
    for gi in range(16):
        if gi < n:
            A.e("s_sub_u32 s%d, s%d, s94" % (60 + 2 * gi, 60 + 2 * gi))
            A.e("v_mov_b32 v%d, s%d" % (vt + gi, 60 + 2 * gi))
        else: A.e("v_mov_b32 v%d, 0" % (vt + gi))
    A.e("v_mov_b32 v%d, 0" % (vt + 16))
    A.e("s_lshl_b32 s60, s2, 9"); A.e("s_lshl_b32 s61, s%d, 6" % wave_sgpr); A.e("s_add_u32 s60, s60, s61"); A.e("s_add_u32 s60, s60, 0x%x" % (STAMP + 0xC0000))
    A.e("s_mov_b32 s%d, 0x10000000" % (srd + 2))
    A.e("s_mov_b64 exec, 1")
    for q in range(4): A.e("buffer_store_dwordx4 v[%d:%d], v%d, s[%d:%d], s60 offen offset:%d" % (vt + 4 * q, vt + 4 * q + 3, vt + 16, srd, srd + 3, 16 * q))
    A.e("s_mov_b64 exec, -1")
def stamp_end(A, opt, kid, vt, wave_sgpr=None):
    if not opt.get("stamp"): return
    A.e("s_waitcnt vmcnt(0) lgkmcnt(0)")
    A.e("s_memrealtime s[96:97]")
    A.e("s_memtime s[98:99]")
    if opt.get("stamp") == 2:
        A.e("s_load_dwordx2 s[84:85], s[0:1], 64")
        A.e("s_waitcnt lgkmcnt(0)")
        A.e("s_add_u32 s80, s84, %d" % ((3 - kid) * 512)); A.e("s_addc_u32 s81, s85, 0"); A.e("s_and_b32 s81, s81, 0xffff"); A.e("s_mov_b32 s82, 256"); A.e("s_mov_b32 s83, 0x00020000")
        A.e("s_sub_u32 s98, s98, s94"); A.e("s_sub_u32 s88, s88, s94"); A.e("s_not_b32 s92, s92")
        A.e("v_mov_b32 v%d, s92" % vt); A.e("v_mov_b32 v%d, s96" % (vt + 1)); A.e("v_mov_b32 v%d, s98" % (vt + 2)); A.e("v_mov_b32 v%d, s88" % (vt + 3))
        A.e("v_mov_b32 v%d, 0" % (vt + 4))
        A.e("s_mov_b64 exec, 1")
        A.e("s_mul_i32 s86, s2, 37"); A.e("s_and_b32 s86, s86, 0x1f"); A.e("s_cmp_eq_u32 s86, 0"); A.e("s_cselect_b32 s82, s82, 0")
        for q in range(4): A.e("buffer_atomic_umax v%d, v%d, s[80:83], 0 offen offset:%d" % (vt + q, vt + 4, kid * 16 + q * 4))
        return
    A.e("s_load_dwordx2 s[84:85], s[0:1], 72")
    A.e("s_waitcnt lgkmcnt(0)")
    A.e("s_mov_b32 s80, s84"); A.e("s_and_b32 s81, s85, 0xffff"); A.e("s_mov_b32 s82, 0x10000000"); A.e("s_mov_b32 s83, 0x00020000")
    A.e("s_lshl_b32 s86, s2, 8")
    if wave_sgpr is not None:
        A.e("s_lshl_b32 s87, s%d, 5" % wave_sgpr); A.e("s_add_u32 s86, s86, s87")
    A.e("s_add_u32 s86, s86, 0x%x" % (STAMP + kid * 65536))
    A.e("s_sub_u32 s98, s98, s94")
    A.e("s_sub_u32 s88, s88, s94")
    A.e("v_mov_b32 v%d, s92" % vt); A.e("v_mov_b32 v%d, s96" % (vt + 1)); A.e("v_mov_b32 v%d, s98" % (vt + 2)); A.e("v_mov_b32 v%d, s88" % (vt + 3))
    A.e("v_mov_b32 v%d, 0" % (vt + 4))
    A.e("s_mov_b64 exec, 1")
    A.e("buffer_store_dwordx4 v[%d:%d], v%d, s[80:83], s86 offen" % (vt, vt + 3, vt + 4))

def gen_k0(A, opt):
    kernel_begin(A, "k0_ln_kernel")
    A.e("s_cmp_ge_u32 s2, 256")
    A.e("s_cbranch_scc1 K0_END")
    stamp_begin(A, opt); stamp_mid(A, opt)
    A.e("s_load_dwordx2 s[4:5], s[0:1], 0")
    A.e("s_load_dwordx2 s[6:7], s[0:1], 72")
    if opt.get("k0_cpf"):
        A.e("s_getpc_b64 s[40:41]")
        A.label("K0_PC")
        A.e("s_and_b32 s41, s41, 0xffff")
        A.e("s_mov_b32 s42, CODE_END-K0_PC")
        A.e("s_mov_b32 s43, 0x00020000")
        A.e("v_lshlrev_b32 v50, 7, v0")
        A.e("s_mov_b32 s44, 32768")
        A.e("buffer_load_dword v51, v50, s[40:43], 0 offen")
        A.e("buffer_load_dword v52, v50, s[40:43], s44 offen")
    A.e("v_lshrrev_b32 v1, 5, v0")
    A.e("v_and_b32 v2, 31, v0")
    A.e("s_lshl_b32 s3, s2, 3")
    A.e("v_add_u32 v1, s3, v1")
    A.e("v_mul_u32_u24 v3, 1152, v1")
    A.e("v_lshl_add_u32 v3, v2, 4, v3")
    A.e("v_cmp_gt_u32 vcc, 8, v2")
    A.e("s_mov_b64 s[20:21], vcc")
    A.e("s_waitcnt lgkmcnt(0)")
    srd(A, 8, 4, SZ_X)
    srd(A, 12, 6, WS_SIZE)
    for r in range(16, 20): pass
    for i in range(12, 16): pass
    A.e("v_mov_b32 v16, 0"); A.e("v_mov_b32 v17, 0"); A.e("v_mov_b32 v18, 0"); A.e("v_mov_b32 v19, 0")
    A.e("buffer_load_dwordx4 v[8:11], v3, s[8:11], 0 offen")
    A.e("buffer_load_dwordx4 v[12:15], v3, s[8:11], 0 offen offset:512")
    A.e("s_mov_b64 exec, s[20:21]")
    A.e("buffer_load_dwordx4 v[16:19], v3, s[8:11], 0 offen offset:1024")
    A.e("s_mov_b64 exec, -1")
    if opt.get("k0_pf", 1):
        A.e("s_load_dwordx4 s[24:27], s[0:1], 32")
        A.e("s_and_b32 s36, s2, 7"); A.e("s_lshr_b32 s37, s2, 3")
        if opt.get("k1_map", 0) == 0:
            A.e("s_and_b32 s38, s36, 3"); A.e("s_lshl_b32 s38, s38, 3"); A.e("s_lshr_b32 s39, s37, 2"); A.e("s_add_u32 s38, s38, s39")
            A.e("s_and_b32 s39, s37, 3"); nrow = 144
        else:
            A.e("s_lshl_b32 s38, s36, 2"); A.e("s_lshr_b32 s39, s37, 3"); A.e("s_add_u32 s38, s38, s39")
            A.e("s_and_b32 s39, s37, 7"); nrow = 72
        A.e("s_mul_i32 s38, s38, 9"); A.e("s_add_u32 s38, s38, 3"); A.e("s_and_b32 s38, s38, 0xfffffffc"); A.e("s_lshl_b32 s38, s38, 5")
        A.e("s_mul_i32 s39, s39, %d" % (nrow * 9216)); A.e("s_add_u32 s38, s38, s39")
        A.e("v_mul_u32_u24 v20, 9216, v0")
        A.e("v_cmp_gt_u32 vcc, %d, v0" % nrow)
        A.e("v_mov_b32 v21, 0x7fffffff")
        A.e("s_nop 0")
        A.e("v_cndmask_b32 v20, v21, v20, vcc")
        A.e("s_waitcnt lgkmcnt(0)")
        srd(A, 28, 24, SZ_W); srd(A, 32, 26, SZ_W)
        A.e("buffer_load_dword v22, v20, s[28:31], s38 offen")
        A.e("buffer_load_dword v23, v20, s[32:35], s38 offen")
    A.e("v_lshrrev_b32 v4, 5, v1")
    A.e("v_mul_u32_u24 v4, 36, v4")
    A.e("v_lshrrev_b32 v5, 1, v2")
    A.e("v_add_u32 v4, v4, v5")
    A.e("v_lshlrev_b32 v4, 6, v4")
    A.e("v_and_b32 v5, 1, v2")
    A.e("v_lshl_add_u32 v4, v5, 5, v4")
    A.e("v_and_b32 v5, 31, v1")
    A.e("v_add_u32 v4, v4, v5")
    A.e("v_lshlrev_b32 v4, 4, v4")
    A.e("s_mov_b32 s16, 0x%x" % (XNF))
    A.e("s_mov_b32 s17, 0x%x" % (XNF + 16384))
    A.e("s_mov_b32 s18, 0x%x" % (XNF + 32768))
    A.e("s_mov_b32 s19, 0x%x" % f2u(1.0 / 576.0))
    A.e("s_waitcnt vmcnt(%d)" % (2 if opt.get("k0_pf", 1) else 0))
    for i in range(12):
        A.e("v_lshlrev_b32 v%d, 16, v%d" % (24 + 2 * i, 8 + i))
        A.e("v_and_b32 v%d, 0xffff0000, v%d" % (25 + 2 * i, 8 + i))
    def reduce32(r, t):
        A.e("s_nop 1")
        A.e("v_add_f32_dpp v%d, v%d, v%d quad_perm:[1,0,3,2] row_mask:0xf bank_mask:0xf" % (r, r, r))
        A.e("s_nop 1")
        A.e("v_add_f32_dpp v%d, v%d, v%d quad_perm:[2,3,0,1] row_mask:0xf bank_mask:0xf" % (r, r, r))
        A.e("s_nop 1")
        A.e("v_add_f32_dpp v%d, v%d, v%d row_half_mirror row_mask:0xf bank_mask:0xf" % (r, r, r))
        A.e("s_nop 1")
        A.e("v_add_f32_dpp v%d, v%d, v%d row_mirror row_mask:0xf bank_mask:0xf" % (r, r, r))
        A.e("v_mov_b32 v%d, v%d" % (t, r))
        A.e("s_nop 1")
        A.e("v_permlane16_swap_b32 v%d, v%d" % (r, t))
        A.e("s_nop 1")
        A.e("v_add_f32 v%d, v%d, v%d" % (r, r, t))
    A.e("v_add_f32 v6, v24, v25")
    A.e("v_add_f32 v7, v26, v27")
    for i in range(4, 24, 2):
        A.e("v_add_f32 v6, v6, v%d" % (24 + i))
        A.e("v_add_f32 v7, v7, v%d" % (25 + i))
    A.e("v_add_f32 v6, v6, v7")
    reduce32(6, 7)
    A.e("v_mul_f32 v6, s19, v6")
    A.e("v_mov_b32 v20, 0"); A.e("v_mov_b32 v21, 0")
    for i in range(0, 24, 2):
        if i == 16: A.e("s_mov_b64 exec, s[20:21]")
        A.e("v_sub_f32 v48, v%d, v6" % (24 + i))
        A.e("v_sub_f32 v49, v%d, v6" % (25 + i))
        A.e("v_fmac_f32 v20, v48, v48")
        A.e("v_fmac_f32 v21, v49, v49")
    A.e("s_mov_b64 exec, -1")
    A.e("v_add_f32 v20, v20, v21")
    reduce32(20, 21)
    A.e("v_mul_f32 v20, s19, v20")
    def rbf(r):
        A.e("v_cvt_pk_bf16_f32 v%d, v%d, v%d" % (r, r, r))
        A.e("v_and_b32 v%d, 0xffff0000, v%d" % (r, r))
    rbf(6); rbf(20)
    A.e("v_add_f32 v20, 0x%x, v20" % f2u(1e-5))
    rbf(20)
    A.e("v_sqrt_f32 v20, v20")
    A.e("s_nop 0")
    rbf(20)
    A.e("v_rcp_f32 v20, v20")
    for i in range(12):
        a, b = 24 + 2 * i, 25 + 2 * i
        A.e("v_sub_f32 v%d, v%d, v6" % (a, a))
        A.e("v_sub_f32 v%d, v%d, v6" % (b, b))
        A.e("v_cvt_pk_bf16_f32 v48, v%d, v%d" % (a, b))
        A.e("v_lshlrev_b32 v%d, 16, v48" % a)
        A.e("v_and_b32 v%d, 0xffff0000, v48" % b)
        A.e("v_mul_f32 v%d, v%d, v20" % (a, a))
        A.e("v_mul_f32 v%d, v%d, v20" % (b, b))
        A.e("v_cvt_pk_bf16_f32 v%d, v%d, v%d" % (8 + i, a, b))
    A.e("buffer_store_dwordx4 v[8:11], v4, s[12:15], s16 offen")
    A.e("buffer_store_dwordx4 v[12:15], v4, s[12:15], s17 offen")
    A.e("s_mov_b64 exec, s[20:21]")
    A.e("buffer_store_dwordx4 v[16:19], v4, s[12:15], s18 offen")
    stamp_end(A, opt, 0, 24)
    A.label("K0_END")
    A.e("s_endpgm")
    return kernel_desc("k0_ln_kernel", 56, 102 if opt.get("stamp") else 48)

def gen_k1(A, opt):
    D = opt.get("k1_D", 4)
    NB = D + 1
    kernel_begin(A, "k1_gemm1_kernel")
    XF = 0
    ACC = 144
    AB = 208
    VA = 232
    VQ = 236
    VO = 239
    VL16 = 242
    VQS = 243
    T = 244
    assert NB * 4 <= 24
    A.e("s_cmp_ge_u32 s2, 256")
    A.e("s_cbranch_scc1 K1_END")
    stamp_begin(A, opt)
    A.e("s_load_dwordx2 s[4:5], s[0:1], 8")
    A.e("s_load_dwordx4 s[8:11], s[0:1], 32")
    A.e("s_load_dwordx2 s[6:7], s[0:1], 72")
    A.e("v_lshrrev_b32 v%d, 6, v0" % T)
    A.e("v_and_b32 v%d, 63, v0" % (T + 1))
    A.e("v_readfirstlane_b32 s12, v%d" % T)
    L = T + 1
    A.e("s_and_b32 s13, s2, 7")
    A.e("s_lshr_b32 s14, s2, 3")
    if opt.get("k1_map", 0) == 0:
        A.e("s_lshr_b32 s15, s13, 2"); A.e("s_lshl_b32 s15, s15, 2"); A.e("s_and_b32 s32, s14, 3"); A.e("s_add_u32 s15, s15, s32")
        A.e("s_and_b32 s32, s13, 3"); A.e("s_lshl_b32 s32, s32, 3"); A.e("s_lshr_b32 s33, s14, 2"); A.e("s_add_u32 s32, s32, s33")
    else:
        A.e("s_and_b32 s15, s14, 7")
        A.e("s_lshl_b32 s32, s13, 2"); A.e("s_lshr_b32 s33, s14, 3"); A.e("s_add_u32 s32, s32, s33")
    SMT, SG = 15, 32
    A.e("s_lshl_b32 s33, s%d, 3" % SMT); A.e("s_add_u32 s33, s33, s12")
    A.e("v_lshlrev_b32 v%d, 4, v%d" % (VL16, L))
    A.e("s_mul_i32 s34, s%d, 9" % SG)
    A.e("s_add_u32 s35, s34, 3"); A.e("s_and_b32 s35, s35, 0xfffffffc")
    A.e("s_sub_u32 s36, s35, s34")
    A.e("s_cmp_eq_u32 s36, 1"); A.e("s_cselect_b32 s37, 1, 0")
    for t in range(4):
        A.e("s_add_u32 s%d, s35, %d" % (40 + t, t))
    for t in range(4):
        A.e("s_add_u32 s38, s37, %d" % t)
        A.e("s_cmp_ge_u32 s38, s36"); A.e("s_cselect_b32 s39, 4, 0")
        A.e("s_add_u32 s38, s38, s39"); A.e("s_add_u32 s%d, s38, s34" % (44 + t))
    A.e("s_cmp_eq_u32 s36, 1"); A.e("s_cselect_b32 s38, 0, 8"); A.e("s_add_u32 s48, s38, s34")
    A.e("s_and_b32 s38, s12, 1")
    A.e("s_lshl_b32 s39, s38, 1")
    A.e("v_lshrrev_b32 v%d, 3, v%d" % (T + 2, L))
    A.e("v_bfe_u32 v%d, v%d, 1, 2" % (T + 3, L))
    A.e("v_bfe_u32 v%d, v%d, 4, 1" % (T + 4, L))
    A.e("v_or_b32 v%d, s39, v%d" % (T + 5, T + 4))
    A.e("v_xor_b32 v%d, v%d, v%d" % (T + 5, T + 5, T + 3))
    A.e("s_lshr_b32 s39, s12, 1"); A.e("s_lshl_b32 s39, s39, 3")
    A.e("v_add_u32 v%d, s39, v%d" % (T + 6, T + 2))
    A.e("v_mul_u32_u24 v%d, 9216, v%d" % (T + 6, T + 6))
    A.e("v_and_b32 v%d, 1, v%d" % (T + 7, L))
    A.e("v_lshl_add_u32 v%d, v%d, 4, v%d" % (T + 6, T + 7, T + 6))
    A.e("v_add_u32 v%d, s35, v%d" % (VO, T + 5))
    A.e("v_lshl_add_u32 v%d, v%d, 5, v%d" % (VO, VO, T + 6))
    A.e("v_add_u32 v%d, s37, v%d" % (VO + 1, T + 5))
    A.e("v_cmp_le_u32 vcc, s36, v%d" % (VO + 1))
    A.e("v_add_u32 v%d, s34, v%d" % (VO + 1, VO + 1))
    A.e("v_add_u32 v%d, 4, v%d" % (VO + 2, VO + 1))
    A.e("v_cndmask_b32 v%d, v%d, v%d, vcc" % (VO + 1, VO + 1, VO + 2))
    A.e("v_lshl_add_u32 v%d, v%d, 5, v%d" % (VO + 1, VO + 1, T + 6))
    A.e("s_min_u32 s49, s%d, 26" % SG)
    A.e("v_lshlrev_b32 v%d, 1, v%d" % (T + 4, T + 4))
    A.e("v_xor_b32 v%d, v%d, v%d" % (T + 4, T + 4, T + 3))
    A.e("s_lshl_b32 s39, s12, 3")
    A.e("v_add_u32 v%d, s39, v%d" % (T + 2, T + 2))
    A.e("v_mul_u32_u24 v%d, 3456, v%d" % (T + 2, T + 2))
    A.e("v_lshl_add_u32 v%d, v%d, 5, v%d" % (T + 2, T + 4, T + 2))
    A.e("s_lshl_b32 s39, s49, 7")
    A.e("v_add_u32 v%d, s39, v%d" % (T + 2, T + 2))
    A.e("v_lshrrev_b32 v%d, 1, v%d" % (T + 3, L))
    A.e("v_mul_u32_u24 v%d, 9216, v%d" % (T + 3, T + 3))
    A.e("s_lshl_b32 s39, s48, 5")
    A.e("v_add_u32 v%d, s39, v%d" % (T + 3, T + 3))
    A.e("s_cmp_lt_u32 s12, 4")
    A.e("s_cselect_b64 vcc, -1, 0")
    A.e("v_cndmask_b32 v%d, v%d, v%d, vcc" % (VO + 2, T + 3, T + 2))
    A.e("v_lshl_add_u32 v%d, v%d, 4, v%d" % (VO + 2, T + 7, VO + 2))
    A.e("s_mov_b32 s51, %d" % (32 * 9216))
    A.e("s_cselect_b32 s51, %d, s51" % (32 * 3456))
    A.e("s_lshl_b32 s52, s12, 10")
    A.e("s_cmp_eq_u32 s12, 5"); A.e("s_cselect_b32 s53, %d, s52" % (5 * 1024 + 128))
    A.e("s_cmp_ge_u32 s12, 6"); A.e("s_cselect_b32 s53, %d, s53" % (7 * 1024))
    A.e("s_waitcnt lgkmcnt(0)")
    A.e("s_bitcmp1_b32 s12, 0")
    A.e("s_cselect_b64 s[16:17], s[10:11], s[8:9]")
    A.e("s_and_b32 s17, s17, 0xffff")
    A.e("s_mov_b32 s18, 0x%x" % SZ_W); A.e("s_mov_b32 s19, 0x00020000")
    A.e("s_cmp_lt_u32 s12, 4")
    A.e("s_cselect_b64 s[20:21], s[4:5], s[16:17]")
    A.e("s_cselect_b32 s22, 0x%x, s18" % SZ_WQKV)
    A.e("s_and_b32 s21, s21, 0xffff")
    A.e("s_cmp_ge_u32 s12, 6"); A.e("s_cselect_b32 s22, 0, s22")
    A.e("s_mov_b32 s23, 0x00020000")
    srd(A, 24, 6, WS_SIZE)
    srd(A, 28, 6, WS_SIZE)
    A.e("s_cmp_ge_u32 s%d, 27" % SG); A.e("s_cselect_b32 s30, 0, s30")
    A.e("s_mul_i32 s54, s33, %d" % (36 * 1024))
    if XNF: A.e("s_add_u32 s54, s54, 0x%x" % XNF)
    A.e("s_mov_b32 s50, 0")
    state = {"n": 0}
    def dma_issue(S, j):
        p, st = divmod(S, 6)
        ldsoff = st * 24576 + j * 8192
        base = 53 if p == 2 else 52
        def f():
            if S == 6 or S == 12:
                if j == 0: A.e("s_mov_b32 s50, 0")
            state[("iss", S, j)] = 1
            A.e("s_add_u32 m0, s%d, 0x%x" % (base, ldsoff))
            A.e("s_nop 0")
            A.vmem("buffer_load_dwordx4 v%d, s[%d:%d], s50 offen lds" % (VO + p, 20 if p == 2 else 16, 23 if p == 2 else 19), ("dma", S))
            if p == 2: A.e("s_add_u32 s50, s50, s51")
            else: A.e("s_add_u32 s50, s50, %d" % (32 * 9216))
        return f
    def x_issue(ks):
        def f():
            if ks % 4 == 0 and ks > 0: A.e("s_add_u32 s54, s54, 4096")
            A.vmem("buffer_load_dwordx4 %s, v%d, s[24:27], s54 offen offset:%d" % (v(XF + 4 * ks, 4), VL16, (ks % 4) * 1024), ("x", ks))
        return f
    PRE = opt.get("k1_pre", 2)
    early = []
    for S in range(6):
        fs = [x_issue(ks) for ks in range(6 * S, 6 * S + 6)] + [dma_issue(S, j) for j in range(3)]
        if S < PRE:
            for f in fs: f()
        else: early.extend(fs)
    A.e("v_bfe_u32 v%d, v%d, 4, 1" % (T + 2, L))
    A.e("v_bfe_u32 v%d, v%d, 5, 1" % (T + 3, L))
    A.e("v_bfe_u32 v%d, v%d, 2, 2" % (T + 4, L))
    A.e("v_and_b32 v%d, 3, v%d" % (T + 5, L))
    A.e("v_lshlrev_b32 v%d, 3, v%d" % (T + 5, T + 5))
    A.e("v_lshl_add_u32 v%d, v%d, 7, v%d" % (T + 6, T + 4, T + 5))
    A.e("v_bfe_u32 v%d, v%d, 3, 1" % (T + 7, L))
    A.e("v_lshl_or_b32 v%d, v%d, 1, v%d" % (T, T + 2, T + 7))
    A.e("v_lshl_add_u32 v%d, v%d, 11, v%d" % (VQ, T + 3, T + 6))
    A.e("v_lshl_add_u32 v%d, v%d, 10, v%d" % (VQ, T + 2, VQ))
    for t in range(4):
        A.e("v_xor_b32 v%d, %d, v%d" % (VA + t, t, T))
        A.e("v_lshl_add_u32 v%d, v%d, 5, v%d" % (VA + t, VA + t, VQ))
    A.e("v_lshl_or_b32 v%d, v%d, 1, v%d" % (T, T + 7, T + 2))
    A.e("v_lshl_add_u32 v%d, v%d, 10, v%d" % (T + 6, T + 3, T + 6))
    A.e("v_lshl_add_u32 v%d, v%d, 5, v%d" % (VQ + 1, T, T + 6))
    A.e("v_xor_b32 v%d, 2, v%d" % (T, T))
    A.e("v_lshl_add_u32 v%d, v%d, 5, v%d" % (VQ + 2, T, T + 6))
    A.e("v_mul_u32_u24 v%d, 1152, v%d" % (VQ, T + 2))
    A.e("v_lshl_add_u32 v%d, v%d, 8, v%d" % (VQ, T + 3, VQ))
    A.e("v_lshl_add_u32 v%d, v%d, 5, v%d" % (VQ, T + 4, VQ))
    A.e("v_add_u32 v%d, v%d, v%d" % (VQ, T + 5, VQ))
    A.e("v_add_u32 v%d, 4096, v%d" % (VQ, VQ))
    A.e("v_and_b32 v%d, 31, v%d" % (VQS, L))
    A.e("v_lshlrev_b32 v%d, 3, v%d" % (VQS, VQS))
    A.e("v_lshl_add_u32 v%d, v%d, 14, v%d" % (VQS, T + 3, VQS))
    A.e("s_mul_i32 s55, s33, 288")
    for i in range(9):
        A.e("s_add_u32 s%d, s%d, s55" % (40 + i, 40 + i))
        A.e("s_lshl_b32 s%d, s%d, 10" % (40 + i, 40 + i))
        A.e("s_add_u32 s%d, s%d, 0x%x" % (40 + i, 40 + i, HF))
    A.e("s_lshl_b32 s56, s49, 18"); A.e("s_lshl_b32 s57, s33, 8"); A.e("s_add_u32 s56, s56, s57"); A.e("s_add_u32 s56, s56, 0x%x" % QKV)
    A.e("s_mov_b32 s58, 0x%x" % NLOG2E)

    if opt.get("xchg", 1):
        A.e("s_lshl_b32 s59, s2, 7"); A.e("s_add_u32 s59, s59, 0x%x" % FLG)
        for j in range(4): A.e("v_mov_b32 v%d, 0" % (T + 4 + j))
        A.e("s_cmp_eq_u32 s12, 7")
        A.e("s_cselect_b64 exec, 0xff, 0")
        A.e("s_cbranch_execz K1_NOZ")
        A.e("buffer_store_dwordx4 %s, v%d, s[24:27], s59 offen" % (v(T + 4, 4), VL16))
        A.label("K1_NOZ")
        A.e("s_mov_b64 exec, -1")
    pf = []
    PF0 = opt.get("k1_pf0", 200)
    if opt.get("k1_pf", 1):
        A.e("s_load_dwordx2 s[60:61], s[0:1], 48")
        A.e("s_load_dwordx2 s[62:63], s[0:1], 16")
        A.e("s_and_b32 s59, s13, 3"); A.e("s_mul_i32 s59, s59, %d" % (1152 * 1152))
        A.e("s_lshl_b32 s72, s14, 3"); A.e("s_add_u32 s72, s72, s12")
        A.e("s_mul_i32 s73, s72, %d" % (41 * 128)); A.e("s_add_u32 s59, s59, s73")
        A.e("s_and_b32 s74, s13, 1"); A.e("s_mul_i32 s74, s74, %d" % (288 * 1152)); A.e("s_mul_i32 s73, s72, %d" % (11 * 128)); A.e("s_add_u32 s74, s74, s73")
        A.e("v_lshlrev_b32 v%d, 7, v%d" % (T + 2, L))
        A.e("s_waitcnt lgkmcnt(0)")
        srd(A, 64, 60, SZ_W); srd(A, 68, 62, SZ_WO)
        def pf1():
            A.e("s_mov_b32 exec_hi, 0x1ff")
            A.vmem("buffer_load_dword v%d, v%d, s[64:67], s59 offen" % (T + 3, T + 2), "pf")
            A.e("s_mov_b32 exec_hi, -1")
        def pf2():
            A.e("s_mov_b64 exec, 0x7ff")
            A.vmem("buffer_load_dword v%d, v%d, s[68:71], s74 offen" % (T + 3, T + 2), "pf")
            A.e("s_mov_b64 exec, -1")
        pf = [pf1, pf2]
    seq = []
    groups = []
    for p in range(3):
        nt = 3 if p == 2 else 4
        if p == 0: gl = [[0], [1], [2], [3], [4, 5]]
        else: gl = [[0, 1], [2], [3], [4, 5]]
        for g in gl:
            groups.append((len(seq), [6 * p + st for st in g]))
            for t in range(nt):
                for st in g:
                    for kk6 in range(6):
                        seq.append((p, t, 6 * st + kk6))
    N = len(seq)
    gstart = {g[0]: gi for gi, g in enumerate(groups)}
    fill = [[] for _ in range(N + 40)]
    last = {}; first = {}
    for i, (p, t, ks) in enumerate(seq):
        last[(p, t)] = i
        first.setdefault((p, t), i)
    def ffn_epi(p, t):
        a = ACC + 16 * t
        ops = []
        sreg = 40 + 4 * p + t if p < 2 else 48
        for j in range(8):
            ops.append("v_mul_f32 v%d, v%d, v%d" % (a + 8 + j, a + j, a + 8 + j))
            ops.append("v_mul_f32 v%d, s58, v%d" % (a + j, a + j))
        for j in range(8): ops.append("v_exp_f32 v%d, v%d" % (a + j, a + j))
        for j in range(8): ops.append("v_add_f32 v%d, 1.0, v%d" % (a + j, a + j))
        for j in range(8): ops.append("v_rcp_f32 v%d, v%d" % (a + j, a + j))
        for j in range(8): ops.append("v_mul_f32 v%d, v%d, v%d" % (a + 8 + j, a + j, a + 8 + j))
        for j in range(4): ops.append("v_cvt_pk_bf16_f32 v%d, v%d, v%d" % (a + j, a + 8 + 2 * j, a + 9 + 2 * j))
        ops.append(("vm", "buffer_store_dwordx4 %s, v%d, s[24:27], s%d offen%s" % (v(a, 4), VL16, sreg, STF[opt.get("k1_st", 0)])))
        return ops
    def qkv_epi(t):
        a = ACC + 16 * t
        ops = []
        for j in range(8): ops.append("v_cvt_pk_bf16_f32 v%d, v%d, v%d" % (a + j, a + 2 * j, a + 2 * j + 1))
        for q in range(4):
            ops.append("s_add_u32 s57, s56, 0x%x" % ((8 * (t - 1) + 2 * q) * 16384))
            ops.append(("vm", "buffer_store_dwordx2 %s, v%d, s[28:31], s57 offen%s" % (v(a + 2 * q, 2), VQS, STF[opt.get("k1_st", 0)])))
        return ops
    cur = 0
    RATE = opt.get("k1_nsl", 16)
    tail_ops = []
    for p in range(3):
        for t in range(3 if p == 2 else 4):
            ops = ffn_epi(p, t) if (p < 2 or t == 0) else qkv_epi(t)
            start = max(cur, last[(p, t)] + 4)
            dead = first.get((p + 1, t), None)
            nsl = RATE if p < 2 else (len(ops) + 4) // 5
            for k, op in enumerate(ops):
                fill[start + k * nsl // len(ops)].append(op)
            pos = start + nsl
            cur = pos
            if dead is not None: assert pos - 1 < dead - 1, (p, t, pos, dead)
    awin = {}
    def areg(p, t):
        return (VQ + t) if p == 2 else (VA + t)
    def emit_reads(i):
        p, t, ks = seq[i]
        st, kk6 = divmod(ks, 6)
        ch, kk = divmod(kk6, 2)
        r = areg(p, t)
        win = (st // 2) * 49152
        curw = awin.get(r, 0)
        if win != curw:
            d = win - curw
            if d > 0: A.e("v_add_u32 v%d, 0x%x, v%d" % (r, d, r))
            else: A.e("v_subrev_u32 v%d, 0x%x, v%d" % (r, -d, r))
            awin[r] = win
        base = (st % 2) * 24576 + ch * 8192
        b = AB + 4 * (i % NB)
        for rr in range(2):
            if p < 2: off = base + kk * 4096 + rr * 512
            elif t == 0: off = base + kk * 512 + rr * 128
            else: off = base + kk * 2048 + rr * 512
            if opt.get("k1_noread") and i >= NB: continue
            if opt.get("k1_halfread") and i >= NB and i % 2: continue
            if opt.get("k1_plainread"):
                A.lds("ds_read_b64 %s, v%d offset:%d" % (v(b + 2 * rr, 2), r, off), ("a", i)); continue
            A.lds("ds_read_b64_tr_b16 %s, v%d offset:%d" % (v(b + 2 * rr, 2), r, off), ("a", i))
    pend_dma = []
    def barrier_for(gi):
        stages = groups[gi][1]
        if not opt.get("k1_nodma"):
            for S in stages: assert ("iss", S, 2) in state, ("dma not issued", S)
        A.wait(vm=[("dma", S) for S in stages], lg_all=(gi > 0))
        if opt.get("gstamp") == 1: A.e("s_memtime s[%d:%d]" % (60 + 2 * gi, 61 + 2 * gi))
        if not opt.get("k1_nobar"): A.e("s_barrier")
        if opt.get("gstamp") == 2: A.e("s_memtime s[%d:%d]" % (60 + 2 * gi, 61 + 2 * gi))
        if gi > 0:
            for S in groups[gi - 1][1]:
                if S + 6 < 18 and not opt.get("k1_nodma"):
                    for j in range(3): pend_dma.append(dma_issue(S + 6, j))
    barrier_for(0)
    stamp_mid(A, opt)
    nread = 0
    for i in range(D):
        emit_reads(nread); nread += 1
    for i in range(N):
        p, t, ks = seq[i]
        A.wait(lg=("a", i), vm=("x", ks) if p == 0 else None)
        a = ACC + 16 * t
        c = "0" if first[(p, t)] == i else v(a, 16)
        if opt.get("k1_fake16"):
            for hh in range(2):
                aa = a + 4 * ((2 * i + hh) % 4)
                A.e("v_mfma_f32_16x16x32_bf16 %s, %s, %s, %s" % (v(aa, 4), v(AB + 4 * (i % NB), 4), v(XF + 4 * ((ks + hh) % 36 if p else max(0, ks - hh)), 4), v(aa, 4)))
        elif not opt.get("k1_nomfma"): A.e("v_mfma_f32_32x32x16_bf16 %s, %s, %s, %s" % (v(a, 16), v(AB + 4 * (i % NB), 4), v(XF + 4 * ks, 4), c))
        target = min(N, i + D + 1)
        while nread < target:
            if nread in gstart:
                if nread > i + D - 1 and ("bar", nread) not in state:
                    break
                if ("bar", nread) not in state:
                    barrier_for(gstart[nread]); state[("bar", nread)] = 1
            emit_reads(nread); nread += 1
        for op in fill[i]:
            if isinstance(op, tuple):
                if not opt.get("k1_nost"): A.vmem(op[1], "st")
            elif not opt.get("k1_noepi"): A.e(op)
        if early:
            if i % opt.get("k1_eint", 2) == 0: early.pop(0)()
        elif pend_dma and i % (2 if len(pend_dma) > 6 else 3) == 0:
            pend_dma.pop(0)()
        elif pf and i >= PF0 and i % 4 == 1:
            pf.pop(0)()
    assert not pend_dma
    A.e("s_nop 7"); A.e("s_nop 3")
    for i in range(N, len(fill)):
        for op in fill[i]:
            if isinstance(op, tuple): A.vmem(op[1], "st")
            else: A.e(op)
    if opt.get("gstamp"):
        A.e("s_memtime s[86:87]")
        A.e("s_waitcnt vmcnt(0) lgkmcnt(0)")
        for gi in range(14):
            A.e("s_sub_u32 s%d, s%d, s94" % (60 + 2 * gi, 60 + 2 * gi))
            A.e("v_mov_b32 v%d, s%d" % (gi, 60 + 2 * gi))
        A.e("v_mov_b32 v14, 0"); A.e("v_mov_b32 v15, 0"); A.e("v_mov_b32 v16, 0")
        A.e("s_lshl_b32 s60, s2, 9"); A.e("s_lshl_b32 s61, s12, 6"); A.e("s_add_u32 s60, s60, s61"); A.e("s_add_u32 s60, s60, 0x%x" % (STAMP + 0x80000))
        A.e("s_mov_b32 s26, 0x10000000")
        A.e("s_mov_b64 exec, 1")
        for q in range(4): A.e("buffer_store_dwordx4 v[%d:%d], v16, s[24:27], s60 offen offset:%d" % (4 * q, 4 * q + 3, 16 * q))
        A.e("s_mov_b64 exec, -1")
    stamp_end(A, opt, 1, 0, 12)
    A.label("K1_END")
    A.e("s_endpgm")
    return kernel_desc("k1_gemm1_kernel", 256, 102 if opt.get("stamp") else 80)

def gen_touch(A, opt):
    sh = opt.get("touch")
    kernel_begin(A, "kt_touch_kernel")
    A.e("s_cmp_ge_u32 s2, 256")
    A.e("s_cbranch_scc1 KT_END")
    A.e("s_load_dwordx16 s[4:19], s[0:1], 0")
    A.e("s_load_dwordx2 s[20:21], s[0:1], 72")
    A.e("s_lshr_b32 s3, s2, 3"); A.e("s_lshl_b32 s3, s3, 8")
    A.e("v_add_u32 v1, s3, v0")
    A.e("v_lshlrev_b32 v1, %d, v1" % sh)
    A.e("s_waitcnt lgkmcnt(0)")
    bl = [(4, SZ_X), (6, SZ_WQKV), (8, SZ_WO), (12, SZ_W), (14, SZ_W), (16, SZ_W), (18, SZ_X), (20, WS_SIZE)]
    if opt.get("touch_ws_only"): bl = bl[-2:]
    if opt.get("touch_in_only"): bl = bl[:-2]
    for n, (b, sz) in enumerate(bl):
        srd(A, 24 + 4 * n, b, sz)
        cover = 8192 << sh
        for o in range(0, sz, cover):
            A.e("s_mov_b32 s22, 0x%x" % o)
            A.e("buffer_load_dword v2, v1, s[%d:%d], s22 offen" % (24 + 4 * n, 27 + 4 * n))
    A.label("KT_END")
    A.e("s_endpgm")
    return kernel_desc("kt_touch_kernel", 8, 64)

HEADER = """; Kernarg layout for this problem (80 bytes, ptrs only, base s[0:1]):
"""

def build(opt):
    A = Asm()
    launches = []
    descs = []
    descs.append(gen_k0(A, opt)); launches.append("; @launch kernel=k0_ln_kernel grid=(256,1,1) block=(256,1,1) lds=0")
    descs.append(gen_k1(A, opt)); launches.append("; @launch kernel=k1_gemm1_kernel grid=(256,1,1) block=(512,1,1) lds=147456")
    if not opt.get("only1"):
        import gen2
        gen2.add(A, opt, launches, descs)
    if opt.get("touch"):
        descs.append(gen_touch(A, opt)); launches.insert(0, "; @launch kernel=kt_touch_kernel grid=(256,1,1) block=(256,1,1) lds=0")
    for k in range(4):
        if opt.get("copy%d" % k):
            import gen2
            B = Asm()
            d = [gen_k0, gen_k1, gen2.gen_k2, gen2.gen_k3][k](B, opt)
            ren = lambda t: t.replace("k%d_" % k, "c%d_" % k).replace("K%d_" % k, "C%d_" % k)
            A.lines.extend(ren(l) for l in B.lines); descs.append(ren(d))
            j = [n for n, l in enumerate(launches) if "kernel=k%d_" % k in l][0]
            launches.insert(j, ren(launches[j]))
    A.label("CODE_END")
    for i in range(opt.get("extra", 0)):
        if i == 0:
            kernel_begin(A, "kx_empty_kernel"); A.e("s_endpgm"); descs.append(kernel_desc("kx_empty_kernel", 8, 16))
        launches.insert(0 if opt.get("front") else len(launches), "; @launch kernel=kx_empty_kernel grid=(256,1,1) block=(256,1,1) lds=0")
    for k in range(4):
        for i in range(opt.get("dup%d" % k, 0)):
            j = [n for n, l in enumerate(launches) if "kernel=k%d_" % k in l][0]
            launches.insert(j, launches[j])
    return HEADER + "\n".join(launches) + "\n" + '.amdgcn_target "amdgcn-amd-amdhsa--gfx950"\n' + A.text() + "".join(descs)

if __name__ == "__main__":
    opt = {}
    out = "cdna_kernels/%s.s" % NAME
    for a in sys.argv[1:]:
        if a.startswith("out="): out = a[4:]
        else:
            k, val = a.split("="); opt[k] = int(val)
    open(out, "w").write(build(opt))
    print("wrote", out)
```
